```python
import torch

def _softmax(x, axis=-1):
    return torch.softmax(x, dim=axis)
def _gelu(x):
    return torch.nn.functional.gelu(x, approximate="tanh")
def _silu(x):
    return torch.nn.functional.silu(x)
def _sigmoid(x):
    return torch.sigmoid(x)
def _layernorm(x, axis=-1, eps=1e-5):
    m = x.mean(dim=axis, keepdim=True)
    v = x.var(dim=axis, keepdim=True, unbiased=False)
    return (x - m) / torch.sqrt(v + eps)
def _scatter_add(tgt, idx, src, axis=0):
    return tgt.clone().index_add_(axis, idx, src)
def _segment_sum(src, seg, n):
    out = torch.zeros((n,) + src.shape[1:], dtype=src.dtype)
    return out.index_add_(0, seg, src)
def _pad(x, pw):
    flat = tuple(v for pair in reversed(pw) for v in pair)
    return torch.nn.functional.pad(x, flat)

kernel_name = 'interleave_layers__linear_kernel_hedgehog__mixer_channel_mlp__prompt'

def setup_inputs():

    _w = (lambda a: (lambda t: t.to(torch.bfloat16) if t.is_floating_point() else t)(torch.as_tensor(a)))
    def _A_setup():
        B, S, D, H = 1, 2048, 512, 32
        Dh = D // H
        return {
            "x": _w((lambda *s: torch.randn(*s, dtype=torch.bfloat16) * 0.05)(B, S, D)),
            "wqkv": _w((lambda *s: torch.randn(*s, dtype=torch.bfloat16) * 0.4)(D, 3 * D)),
            "w_phi": _w((lambda *s: torch.randn(*s, dtype=torch.bfloat16) * 0.4)(H, Dh, Dh) * (Dh ** -0.5)),
            "wo": _w((lambda *s: torch.randn(*s, dtype=torch.bfloat16) * 0.05)(D, D)),
        }
    _A_in = _A_setup()

    def _B_setup():
        B, S, D, F = 1, 2048, 512, 1792
        return {
            "x": _w((lambda *s: torch.randn(*s, dtype=torch.bfloat16) * 0.05)(B, S, D)),
            "w1": _w((lambda *s: torch.randn(*s, dtype=torch.bfloat16) * 3.2)(D, F) * (D ** -0.5)),
            "b1": _w((lambda *s: torch.randn(*s, dtype=torch.bfloat16) * 0.8)(F)),
            "w2": _w((lambda *s: torch.randn(*s, dtype=torch.bfloat16) * 0.8)(F, D) * (F ** -0.5)),
            "b2": _w((lambda *s: torch.randn(*s, dtype=torch.bfloat16) * 0.8)(D)),
        }
    _B_in = _B_setup()

    return {
        "A_x": _A_in["x"],
        "A_wqkv": _A_in["wqkv"],
        "A_w_phi": _A_in["w_phi"],
        "A_wo": _A_in["wo"],
        "B_x": _B_in["x"],
        "B_w1": _B_in["w1"],
        "B_b1": _B_in["b1"],
        "B_w2": _B_in["w2"],
        "B_b2": _B_in["b2"],
    }

def reference(A_x, A_wqkv, A_w_phi, A_wo, B_x, B_w1, B_b1, B_w2, B_b2):
    def _A_ref(x, wqkv, w_phi, wo):
        B, S, D = x.shape
        H = 32; Dh = D // H
        qkv = (lambda x, *d: x.permute(*d))((x @ wqkv).reshape(B, S, 3, H, Dh), 2, 0, 3, 1, 4)
        q, k, v = qkv[0], qkv[1], qkv[2]
        pq = torch.einsum("bhsd,hdf->bhsf", q, w_phi)
        pk = torch.einsum("bhsd,hdf->bhsf", k, w_phi)
        phi_q = torch.concatenate([_softmax(pq, axis=-1), _softmax(-pq, axis=-1)], axis=-1)
        phi_k = torch.concatenate([_softmax(pk, axis=-1), _softmax(-pk, axis=-1)], axis=-1)
        kv = torch.einsum("bhsf,bhsd->bhfd", phi_k, v)
        z  = torch.einsum("bhsf->bhf", phi_k)
        num = torch.einsum("bhqf,bhfd->bhqd", phi_q, kv)
        den = torch.einsum("bhqf,bhf->bhq", phi_q, z)[..., None] + 1e-6
        o = num / den
        return (lambda x, *d: x.permute(*d))(o, 0, 2, 1, 3).reshape(B, S, D) @ wo

    def _B_ref(x, w1, b1, w2, b2):
        y = _layernorm(x, axis=-1)
        h = _gelu(torch.einsum("bsd,df->bsf", y, w1) + b1)
        return torch.einsum("bsf,fd->bsd", h, w2) + b2

    x = A_x
    x = x + _A_ref(_layernorm(x, axis=-1), A_wqkv, A_w_phi, A_wo)
    x = x + _B_ref(_layernorm(x, axis=-1), B_w1, B_b1, B_w2, B_b2)
    x = x + _A_ref(_layernorm(x, axis=-1), A_wqkv, A_w_phi, A_wo)
    x = x + _B_ref(_layernorm(x, axis=-1), B_w1, B_b1, B_w2, B_b2)
    return x
```

```python
import re

TRANS = ("v_exp_f32", "v_log_f32", "v_rcp_f32", "v_rsq_f32", "v_sqrt_f32", "v_sin_f32", "v_cos_f32")

_reg_re = re.compile(r"^(-|abs\()?\|?([vsa])(?:(\d+)|\[(\d+):(\d+)\])\|?\)?$")


def regs_of(tok):
    tok = tok.strip()
    if tok in ("vcc",):
        return ("s", {106, 107})
    if tok == "vcc_lo":
        return ("s", {106})
    if tok == "vcc_hi":
        return ("s", {107})
    if tok == "exec":
        return ("s", {126, 127})
    if tok == "m0":
        return ("s", {124})
    m = _reg_re.match(tok)
    if not m:
        return None
    k = m.group(2)
    if m.group(3) is not None:
        return (k, {int(m.group(3))})
    return (k, set(range(int(m.group(4)), int(m.group(5)) + 1)))


class Ins:
    __slots__ = ("text", "mn", "kind", "vw", "vr", "sw", "sr", "passes", "srcc", "srcab", "wide_store",
                 "weight", "region", "dst_first", "dpp")


class Kernel:
    def __init__(self, name):
        self.name = name
        self.out = []
        self.hist = []
        self.region = 0
        self._nreg = 0
        self._lab = 0

    def newlabel(self, p="L"):
        self._lab += 1
        return f"{p}_{self.name}_{self._lab}"

    def label(self, name):
        self.out.append(f"{name}:")

    def comment(self, s):
        self.out.append(f"    ; {s}")

    def begin_cond(self):
        self._nreg += 1
        self.region = self._nreg

    def end_cond(self):
        self.region = 0

    def fence(self):
        self("s_nop 15")
        self("s_nop 3")

    def _parse(self, text):
        I = Ins()
        I.text = text
        body = text.split(";")[0].strip()
        parts = body.split(None, 1)
        mn = parts[0]
        I.mn = mn
        ops = []
        if len(parts) > 1:
            cur = ""
            depth = 0
            for ch in parts[1]:
                if ch in "[(":
                    depth += 1
                if ch in "])":
                    depth -= 1
                if ch == "," and depth == 0:
                    ops.append(cur.strip())
                    cur = ""
                else:
                    cur += ch
            ops.append(cur.strip())
        mods = []
        if ops:
            last = ops[-1].split()
            ops[-1] = last[0] if last else ""
            mods = last[1:]
        I.dpp = any(m.startswith(("row_", "quad_perm", "wave_")) for m in mods)
        vw, vr, sw, sr = set(), set(), set(), set()

        def add(tok, wr):
            r = regs_of(tok)
            if r is None:
                return
            k, s = r
            if k == "a":
                s = {x + 1000 for x in s}
                k = "v"
            if k == "v":
                (vw if wr else vr).update(s)
            else:
                (sw if wr else sr).update(s)

        I.passes = 0
        I.srcc = set()
        I.srcab = set()
        I.wide_store = set()
        I.weight = 1
        if mn.startswith("v_mfma"):
            I.kind = "mfma"
            I.passes = 8 if "32x32" in mn else 4
            add(ops[0], True)
            for o in ops[1:4]:
                add(o, False)
            for o in ops[1:3]:
                r = regs_of(o)
                if r:
                    I.srcab |= {x + (1000 if r[0] == "a" else 0) for x in r[1]}
            r = regs_of(ops[3])
            if r and r[0] in "va":
                I.srcc = {x + (1000 if r[0] == "a" else 0) for x in r[1]}
        elif mn.startswith("v_permlane") and "swap" in mn:
            I.kind = "valu"
            for o in ops[:2]:
                add(o, True)
                add(o, False)
        elif mn.startswith("v_cmp"):
            I.kind = "valu"
            add(ops[0], True)
            for o in ops[1:]:
                add(o, False)
        elif mn.startswith("v_"):
            I.kind = "valu"
            add(ops[0], True)
            start = 1
            if mn.startswith(("v_add_co", "v_addc_co", "v_sub_co", "v_subb_co", "v_subrev_co")):
                add(ops[1], True)
                start = 2
            for o in ops[start:]:
                add(o, False)
            if mn.startswith(("v_fmac", "v_pk_fmac", "v_dot2c")):
                add(ops[0], False)
            if mn.startswith("v_cndmask") and len(ops) == 3:
                sr.update({106, 107})
        elif mn.startswith("ds_read") or mn.startswith("ds_bpermute") or mn.startswith("ds_permute") or mn.startswith("ds_swizzle"):
            I.kind = "ds"
            add(ops[0], True)
            for o in ops[1:]:
                add(o, False)
        elif mn.startswith("ds_"):
            I.kind = "ds"
            for o in ops:
                add(o, False)
        elif mn.startswith("global_load_lds"):
            I.kind = "dma"
            for o in ops:
                add(o, False)
        elif mn.startswith("global_load"):
            I.kind = "vmem"
            add(ops[0], True)
            for o in ops[1:]:
                add(o, False)
        elif mn.startswith("global_store"):
            I.kind = "vmem"
            for o in ops:
                add(o, False)
            if "x4" in mn or "x3" in mn:
                r = regs_of(ops[1])
                I.wide_store = set(r[1])
        elif mn.startswith("global_atomic"):
            I.kind = "vmem"
            if "sc0" in mods:
                add(ops[0], True)
                for o in ops[1:]:
                    add(o, False)
            else:
                for o in ops:
                    add(o, False)
        elif mn.startswith("buffer_"):
            raise NotImplementedError(mn)
        elif mn == "s_nop":
            I.kind = "nop"
            I.weight = int(ops[0], 0) + 1
        elif mn.startswith("s_"):
            I.kind = "salu"
            if mn.startswith(("s_cmp", "s_cbranch", "s_branch", "s_waitcnt", "s_barrier", "s_endpgm", "s_setprio", "s_sleep")):
                for o in ops:
                    add(o, False)
            else:
                if ops:
                    add(ops[0], True)
                for o in ops[1:]:
                    add(o, False)
        else:
            raise ValueError("unknown instr " + text)
        I.vw, I.vr, I.sw, I.sr = vw, vr, sw, sr
        I.region = self.region
        return I

    def _need(self, P, C):
        n = 0
        pk, ck = P.kind, C.kind
        if pk == "valu":
            raw = P.vw & C.vr
            if ck == "mfma" and raw:
                n = max(n, 2)
            if ck == "valu":
                if raw and P.mn.startswith(TRANS) and not C.mn.startswith(TRANS):
                    n = max(n, 1)
                if raw and (C.mn.startswith("v_permlane") or C.dpp):
                    n = max(n, 2)
                if raw and C.mn.startswith(("v_readfirstlane", "v_readlane")):
                    n = max(n, 1)
                if P.sw & C.sr:
                    n = max(n, 4 if C.mn.startswith(("v_readlane", "v_writelane")) else 2)
                if P.mn.startswith("v_dot2"):
                    if (P.vw & (C.vr | C.vw)):
                        same = C.mn == P.mn
                        if not same:
                            n = max(n, 3)
                        else:
                            ops = C.text.split(None, 1)[1].split(",")
                            ab = set()
                            for o in ops[1:3]:
                                r = regs_of(o.strip().split()[0])
                                if r and r[0] == "v":
                                    ab |= r[1]
                            if P.vw & ab:
                                n = max(n, 3)
            if ck in ("vmem", "dma") and (P.sw & C.sr):
                n = max(n, 5)
            if P.mn.startswith("v_dot2") and ck in ("vmem", "ds", "dma", "mfma") and raw:
                n = max(n, 3)
        if pk == "mfma":
            big = {4: 8, 8: 12}[P.passes]
            if ck == "mfma":
                if P.vw & C.srcab:
                    n = max(n, big)
                if P.vw & C.srcc:
                    if C.srcc == P.vw and C.passes == P.passes:
                        pass
                    else:
                        n = max(n, P.passes + 2)
                if (P.vw & C.vw) and not (C.srcc == P.vw):
                    n = max(n, big)
            elif ck == "valu":
                if P.vw & (C.vr | C.vw):
                    n = max(n, big)
                if P.srcc & C.vw:
                    n = max(n, P.passes - 1)
            elif ck in ("vmem", "ds", "dma"):
                if P.vw & (C.vr | C.vw):
                    n = max(n, big)
                if P.srcc & C.vw:
                    n = max(n, P.passes - 1)
        if pk == "salu" and 124 in P.sw and ck == "dma":
            n = max(n, 1)
        if pk == "vmem" and P.wide_store:
            if P.wide_store & C.vw:
                n = max(n, 2 if ck in ("valu", "mfma") else 1)
        return n

    def __call__(self, text):
        C = self._parse(text)
        dist = 0
        need_extra = 0
        for P in reversed(self.hist[-40:]):
            req = self._need(P, C)
            if req > dist:
                need_extra = max(need_extra, req - dist)
            if P.region == 0 or P.region == C.region:
                dist += P.weight
            if dist >= 24:
                break
        while need_extra > 0:
            k = min(need_extra, 16)
            N = self._parse(f"s_nop {k-1}")
            self.hist.append(N)
            self.out.append(f"    s_nop {k-1}")
            need_extra -= k
        self.hist.append(C)
        self.out.append("    " + text)

    def text(self):
        return "\n".join(self.out)


def vr(a, n=1):
    return f"v{a}" if n == 1 else f"v[{a}:{a+n-1}]"


def sr(a, n=1):
    return f"s{a}" if n == 1 else f"s[{a}:{a+n-1}]"
```

```python
from k_common import *

def stats_from_packed(k, packed, n, vS, vQ, ones):
    k(f"v_mov_b32 v{vS}, 0")
    k(f"v_mov_b32 v{vQ}, 0")
    for j in range(n):
        k(f"v_dot2_f32_bf16 v{vS}, v{packed+j}, v{ones}, v{vS}")
        k(f"v_dot2_f32_bf16 v{vQ}, v{packed+j}, v{packed+j}, v{vQ}")

def gen_k2(name, layer):
    a = layer == "a"
    PHI = L.PHIQA if a else L.PHIQB
    KV = L.KVA if a else L.KVB
    ZZ = L.ZA if a else L.ZB
    XIN = L.XF0 if a else L.X2F
    XOUT = L.X1F if a else L.X3F
    STO = L.ST1 if a else L.ST3
    k = Kernel(name)
    prologue(k)
    k("s_and_b32 s8, s2, 7")
    k("s_lshr_b32 s9, s2, 3")
    k("s_lshl_b32 s6, s8, 3")
    k("s_and_b32 s10, s9, 7")
    k("s_add_u32 s6, s6, s10")
    k("s_lshr_b32 s7, s9, 3")
    k("v_and_b32 v3, 15, v1")
    k("v_lshrrev_b32 v4, 4, v1")
    k("v_lshlrev_b32 v5, 4, v1")
    k("v_lshrrev_b32 v6, 2, v3")
    k("v_and_b32 v7, 3, v3")
    k("v_lshl_add_u32 v8, v4, 2, v6")
    k("v_lshlrev_b32 v9, 2, v1")
    k("v_mov_b32 v10, 0x3f803f80")
    KVR, PQ, ZR, ACC, OF, FR, TA = 32, 96, 160, 32, 192, 224, 16
    KT = 192
    k("s_waitcnt lgkmcnt(0)")
    k("s_lshl_b32 s10, s3, 10")
    k(f"s_add_u32 s10, s10, {ZZ}")
    add64(k, 40, S_WS, "s10")
    k("global_load_dwordx4 v[12:15], v5, s[40:41]")
    k("s_lshl_b32 s10, s3, 14")
    k(f"s_add_u32 s10, s10, {KV}")
    add64(k, 42, S_WS, "s10")
    k("v_add_u32 v16, 4096, v9")
    k("v_add_u32 v17, 8192, v9")
    k("v_add_u32 v18, 12288, v9")
    def kvload(h):
        for j in range(8):
            off = h * 2048 + j * 256
            vo = [9, 16, 17, 18][off >> 12]
            k(f"global_load_dword v{KVR+h*8+j}, v{vo}, s[42:43] offset:{off&4095}")
    k("s_lshl_b32 s10, s6, 6")
    k("s_lshl_b32 s11, s3, 3")
    k("s_add_u32 s10, s10, s11")
    k("s_lshl_b32 s10, s10, 10")
    k(f"s_add_u32 s10, s10, {PHI}")
    add64(k, 44, S_WS, "s10")
    k("v_add_u32 v19, 4096, v5")
    k("v_add_u32 v20, 32768, v5")
    k("v_add_u32 v21, 36864, v5")
    def pqload(h):
        for i in range(2):
            vo = [5, 19, 20, 21][i * 2 + (h >> 2)]
            k(f"global_load_dwordx4 {vr(PQ+(i*8+h)*4,4)}, v{vo}, s[44:45] offset:{(h&3)*1024}")
    for h in range(4):
        kvload(h)
        pqload(h)
    k("v_lshrrev_b32 v22, 1, v3")
    k("v_xor_b32 v23, v22, v4")
    k("v_xor_b32 v24, 4, v23")
    k("v_and_b32 v25, 1, v1")
    k("v_lshlrev_b32 v25, 4, v25")
    k("v_lshl_add_u32 v25, v4, 10, v25")
    k("v_lshl_add_u32 v23, v23, 5, v25")
    k("v_lshl_add_u32 v24, v24, 5, v25")
    k("v_add_u32 v24, 4096, v24")
    k("s_lshl_b32 s10, s3, 17")
    k("s_lshl_b32 s11, s7, 8")
    k("s_add_u32 s10, s10, s11")
    add64(k, 46, S_WO, "s10")
    k("s_lshl_b32 s48, s3, 15")
    k("s_waitcnt vmcnt(40)")
    k("v_cvt_pk_bf16_f32 v12, v12, v13")
    k("v_cvt_pk_bf16_f32 v13, v14, v15")
    k("s_lshl_b32 s10, s3, 9")
    k("s_add_u32 s49, s10, 131072")
    k("v_lshl_add_u32 v14, v1, 3, s49")
    k("ds_write_b64 v14, v[12:13]")
    for h in range(4, 8):
        if h == 6:
            k("s_waitcnt vmcnt(40)")
        kvload(h)
        pqload(h)
    k("v_lshl_add_u32 v14, v4, 3, s49")
    k("s_waitcnt lgkmcnt(0)")
    for h in range(8):
        k(f"ds_read_b64 {vr(ZR+h*4,2)}, v14 offset:{h*64}")
        k(f"ds_read_b64 {vr(ZR+h*4+2,2)}, v14 offset:{h*64+32}")
    TRA = 240
    k("v_and_b32 v26, 7, v8")
    k("v_lshlrev_b32 v27, 8, v8")
    k("v_lshl_add_u32 v27, v7, 3, v27")
    k("v_add_u32 v27, s48, v27")
    for nt in range(8):
        k(f"v_xor_b32 v28, {nt}, v26")
        k(f"v_lshl_add_u32 v{TRA+nt}, v28, 5, v27")
    k("s_lshl_b32 s10, s6, 5")
    k("s_lshl_b32 s11, s7, 2")
    k("s_add_u32 s10, s10, s11")
    k("s_add_u32 s10, s10, s3")
    k("s_lshl_b32 s50, s10, 10")
    k(f"s_add_u32 s10, s50, {XIN}")
    add64(k, 52, S_WS, "s10")
    def wodma(j0, j1):
        for j in range(j0, j1):
            k(f"s_add_u32 m0, s48, {j*1024}")
            k(f"global_load_lds_dwordx4 v{23+(j&1)}, s[46:47]")
            if j & 1:
                add64(k, 46, 46, 8192)
    ndma = 0
    k(f"v_mov_b32 v29, {f32hex(1e-6)}")
    for h in range(8):
        k(f"s_waitcnt vmcnt({min(63,(7-h)*10+ndma)})")
        if h == 0:
            k("s_waitcnt lgkmcnt(0)")
        for j in range(4):
            k(f"v_cvt_pk_bf16_f32 v{KT+h*4+j}, v{KVR+h*8+2*j}, v{KVR+h*8+2*j+1}")
        if h >= 3:
            n = {3: 4, 4: 6, 5: 6, 6: 8, 7: 8}[h]
            wodma(ndma, ndma + n)
            ndma += n
        for i in range(2):
            nm = 224 + i * 8
            k(f"v_mfma_f32_16x16x32_bf16 {vr(nm,4)}, {vr(KT+h*4,4)}, {vr(PQ+(i*8+h)*4,4)}, 0")
            k(f"v_mfma_f32_16x16x32_bf16 {vr(nm+4,4)}, {vr(ZR+h*4,4)}, {vr(PQ+(i*8+h)*4,4)}, 0")
        for i in range(2):
            nm = 224 + i * 8
            d = nm + 4
            k(f"v_cvt_pk_bf16_f32 v{d}, v{d}, v{d}")
            k(f"v_cvt_pk_bf16_f32 v{d+2}, v{nm}, v{nm+1}")
            k(f"v_cvt_pk_bf16_f32 v{d+3}, v{nm+2}, v{nm+3}")
            k(f"v_lshlrev_b32 v{d}, 16, v{d}")
            k(f"v_add_f32 v{d}, v{d}, v29")
            k(f"v_cvt_pk_bf16_f32 v{d}, v{d}, v{d}")
            k(f"v_lshlrev_b32 v{d}, 16, v{d}")
            k(f"v_rcp_f32 v{d}, v{d}")
            k(f"v_lshlrev_b32 v{nm}, 16, v{d+2}")
            k(f"v_and_b32 v{nm+1}, 0xffff0000, v{d+2}")
            k(f"v_lshlrev_b32 v{nm+2}, 16, v{d+3}")
            k(f"v_and_b32 v{nm+3}, 0xffff0000, v{d+3}")
            k(f"v_pk_mul_f32 {vr(nm,2)}, {vr(nm,2)}, {vr(d,2)} op_sel_hi:[1,0]")
            k(f"v_pk_mul_f32 {vr(nm+2,2)}, {vr(nm+2,2)}, {vr(d,2)} op_sel_hi:[1,0]")
            of = PQ + (i * 8 + (h & ~1)) * 4 + (h & 1) * 2
            k(f"v_cvt_pk_bf16_f32 v{of}, v{nm}, v{nm+1}")
            k(f"v_cvt_pk_bf16_f32 v{of+1}, v{nm+2}, v{nm+3}")
    assert ndma == 32
    k("global_load_dwordx4 v[12:15], v5, s[52:53]")
    k("v_add_u32 v16, 16384, v5")
    k("global_load_dwordx4 v[16:19], v16, s[52:53]")
    def acc(i, nt): return ACC + (i * 8 + nt) * 4
    FRG = 160
    for pp in range(4):
        k(f"s_waitcnt vmcnt({(3-pp)*8+2})")
        for nt in range(8):
            for t1 in range(2):
                k(f"ds_read_b64_tr_b16 {vr(FRG+nt*4+t1*2,2)}, v{TRA+nt} offset:{pp*8192+t1*4096}")
                if nt == 7 and t1 == 0:
                    k("s_waitcnt lgkmcnt(13)")
        for nt in range(8):
            k(f"s_waitcnt lgkmcnt({min(15,2*(7-nt))})")
            for i in range(2):
                c = "0" if pp == 0 else vr(acc(i, nt), 4)
                k(f"v_mfma_f32_16x16x32_bf16 {vr(acc(i,nt),4)}, {vr(FRG+nt*4,4)}, {vr(PQ+(i*8+pp*2)*4,4)}, {c}")
    if a:
        lz = k.newlabel("z")
        k("s_cmp_ge_u32 s2, 17")
        k(f"s_cbranch_scc1 {lz}")
        k("s_cmp_lg_u32 s3, 0")
        k(f"s_cbranch_scc1 {lz}")
        k.begin_cond()
        for j in range(4):
            k(f"v_mov_b32 v{20+j}, 0")
        k("s_lshl_b32 s10, s2, 12")
        k(f"s_add_u32 s10, s10, {L.KVB}")
        add64(k, 54, S_WS, "s10")
        for j in range(4):
            k(f"global_store_dwordx4 v5, v[20:23], s[54:55] offset:{j*1024}")
        k.end_cond()
        k.label(lz)
    k("s_barrier")
    k("s_lshl_b32 s10, s3, 12")
    k("v_add_u32 v20, s10, v5")
    for d in range(4):
        ld = k.newlabel("rd")
        k(f"s_cmp_eq_u32 s3, {d}")
        k(f"s_cbranch_scc1 {ld}")
        k.begin_cond()
        for i in range(2):
            for hf in range(2):
                k(f"ds_write_b128 v20, {vr(acc(i,2*d+hf),4)} offset:{d*16384+(i*2+hf)*1024}")
        k.end_cond()
        k.label(ld)
    FIN = 96
    lend_ = k.newlabel("own")
    for d in range(4):
        ld = k.newlabel("ow")
        k(f"s_cmp_lg_u32 s3, {d}")
        k(f"s_cbranch_scc1 {ld}")
        k.begin_cond()
        for i in range(2):
            for hf in range(2):
                for j in range(4):
                    k(f"v_mov_b32 v{FIN+(i*2+hf)*4+j}, v{acc(i,2*d+hf)+j}")
        k.end_cond()
        k.label(ld)
    k("s_waitcnt lgkmcnt(0)")
    k("s_barrier")
    k("s_lshl_b32 s10, s3, 14")
    k("v_add_u32 v20, s10, v5")
    RCV = 112
    for s_ in range(1, 4):
        k(f"s_add_u32 s10, s3, {s_}")
        k("s_and_b32 s10, s10, 3")
        k("s_lshl_b32 s10, s10, 12")
        k(f"v_add_u32 v{20+s_}, s10, v20")
        for q in range(4):
            k(f"ds_read_b128 {vr(RCV+((s_-1)*4+q)*4,4)}, v{20+s_} offset:{q*1024}")
    k("s_waitcnt lgkmcnt(0)")
    for s_ in range(3):
        for q in range(4):
            for j in range(0, 4, 2):
                k(f"v_pk_add_f32 {vr(FIN+q*4+j,2)}, {vr(FIN+q*4+j,2)}, {vr(RCV+(s_*4+q)*4+j,2)}")
    k("s_waitcnt vmcnt(0)")
    OUTR = 160
    for i in range(2):
        for q2 in range(4):
            f = FIN + i * 8 + q2 * 2
            xr = 12 + i * 4 + q2
            k(f"v_cvt_pk_bf16_f32 v24, v{f}, v{f+1}")
            k(f"v_lshlrev_b32 v{f}, 16, v24")
            k(f"v_and_b32 v{f+1}, 0xffff0000, v24")
            k(f"v_lshlrev_b32 v26, 16, v{xr}")
            k(f"v_and_b32 v27, 0xffff0000, v{xr}")
            k(f"v_pk_add_f32 {vr(f,2)}, {vr(f,2)}, v[26:27]")
            k(f"v_cvt_pk_bf16_f32 v{OUTR+i*4+q2}, v{f}, v{f+1}")
    k(f"s_add_u32 s10, s50, {XOUT}")
    add64(k, 54, S_WS, "s10")
    k("v_add_u32 v20, 16384, v5")
    k(f"global_store_dwordx4 v5, {vr(OUTR,4)}, s[54:55]")
    k(f"global_store_dwordx4 v20, {vr(OUTR+4,4)}, s[54:55]")
    k("s_lshl_b32 s10, s7, 2")
    k("s_add_u32 s10, s10, s3")
    k("s_lshr_b32 s11, s10, 3")
    k("s_lshl_b32 s11, s11, 10")
    k("s_lshr_b32 s12, s10, 1")
    k("s_and_b32 s12, s12, 3")
    k("s_lshl_b32 s12, s12, 8")
    k("s_add_u32 s11, s11, s12")
    k("s_and_b32 s12, s10, 1")
    k("s_lshl_b32 s12, s12, 3")
    k("s_add_u32 s11, s11, s12")
    k("s_lshl_b32 s12, s6, 12")
    k("s_add_u32 s11, s11, s12")
    k(f"s_add_u32 s11, s11, {STO}")
    add64(k, 56, S_WS, "s11")
    for i in range(2):
        stats_from_packed(k, OUTR + i * 4, 4, 24 + i * 2, 25 + i * 2, 10)
    for i in range(2):
        allreduce_g(k, 24 + i * 2, 28, "v_add_f32")
        allreduce_g(k, 25 + i * 2, 29, "v_add_f32")
    k("s_mov_b64 exec, 0xffff")
    k("global_store_dwordx2 v5, v[24:25], s[56:57]")
    k("global_store_dwordx2 v5, v[26:27], s[56:57] offset:2048")
    k("s_mov_b64 exec, -1")
    return k, 131072 + 2048


def gen_k4(name, layer):
    a = layer == "a"
    HF = L.HFA if a else L.HFB
    XIN = L.X1F if a else L.X3F
    k = Kernel(name)
    prologue(k)
    k("s_and_b32 s8, s2, 7")
    k("s_lshr_b32 s9, s2, 3")
    k("s_lshl_b32 s6, s8, 2")
    k("s_and_b32 s10, s9, 3")
    k("s_add_u32 s6, s6, s10")
    k("s_lshr_b32 s7, s9, 2")
    k("v_and_b32 v3, 15, v1")
    k("v_lshrrev_b32 v4, 4, v1")
    k("v_lshlrev_b32 v5, 4, v1")
    k("v_lshrrev_b32 v6, 2, v3")
    k("v_and_b32 v7, 3, v3")
    k("v_lshl_add_u32 v8, v4, 2, v6")
    k("v_mov_b32 v10, 0x3f803f80")
    NS = 7
    HR, ACC, FRG, TRA = 32, 144, 208, 240
    def hreg(slot, i): return HR + slot * 16 + i * 4
    def acc(i, nt): return ACC + (i * 4 + nt) * 4
    for i in range(1, 4):
        k(f"v_add_u32 v{11+i}, {i*57344}, v5")
    k("v_lshrrev_b32 v15, 3, v1")
    k("v_and_b32 v16, 7, v1")
    k("v_lshrrev_b32 v17, 1, v16")
    k("v_lshrrev_b32 v18, 1, v15")
    k("v_and_b32 v18, 3, v18")
    k("v_xor_b32 v17, v17, v18")
    k("v_and_b32 v16, 1, v16")
    k("v_lshlrev_b32 v16, 4, v16")
    k("v_lshl_add_u32 v16, v17, 5, v16")
    k("v_lshl_add_u32 v15, v15, 10, v16")
    k("s_mul_i32 s48, s3, %d" % (NS * 4096))
    k("v_lshrrev_b32 v16, 1, v8")
    k("v_and_b32 v16, 3, v16")
    k("v_lshlrev_b32 v17, 7, v8")
    k("v_lshl_add_u32 v17, v7, 3, v17")
    k("v_add_u32 v17, s48, v17")
    for nt in range(4):
        k(f"v_xor_b32 v18, {nt}, v16")
        k(f"v_lshl_add_u32 v{TRA+nt}, v18, 5, v17")
    k("s_waitcnt lgkmcnt(0)")
    k("s_mul_i32 s10, s6, 224")
    k("s_mul_i32 s11, s3, 14")
    k("s_add_u32 s10, s10, s11")
    k("s_lshl_b32 s10, s10, 10")
    k(f"s_add_u32 s10, s10, {HF}")
    add64(k, 40, S_WS, "s10")
    k("s_mul_i32 s10, s3, %d" % (448 * 1024))
    k("s_lshl_b32 s11, s7, 7")
    k("s_add_u32 s10, s10, s11")
    add64(k, 42, S_W2, "s10")
    def rowbase(jp, ii):
        sb, j = divmod(jp, 7)
        if j < 3: r = j * 32 + ii * 8
        elif j < 6: r = 112 + (j - 3) * 32 + ii * 8
        else: r = 96 + ii * 8 + (96 if ii >= 2 else 0)
        return sb * 224 + r
    def issue(jp):
        slot = jp % NS
        for i in range(4):
            k(f"global_load_dwordx4 {vr(hreg(slot,i),4)}, v{[5,12,13,14][i]}, s[40:41]")
        add64(k, 40, 40, 1024)
        for ii in range(4):
            add64(k, 44, 42, rowbase(jp, ii) * 1024)
            k(f"s_add_u32 m0, s48, {slot*4096+ii*1024}")
            k("global_load_lds_dwordx4 v15, s[44:45]")
    for jp in range(NS):
        issue(jp)
    for jp in range(14):
        slot = jp % NS
        rem = min(NS - 1, 13 - jp)
        k(f"s_waitcnt vmcnt({rem*8})")
        fb = FRG + (jp & 1) * 16
        for nt in range(4):
            for t1 in range(2):
                k(f"ds_read_b64_tr_b16 {vr(fb+nt*4+t1*2,2)}, v{TRA+nt} offset:{slot*4096+t1*2048}")
        for nt in range(4):
            k(f"s_waitcnt lgkmcnt({2*(3-nt)})")
            for i in range(4):
                c = "0" if jp == 0 else vr(acc(i, nt), 4)
                k(f"v_mfma_f32_16x16x32_bf16 {vr(acc(i,nt),4)}, {vr(fb+nt*4,4)}, {vr(hreg(slot,i),4)}, {c}")
        if jp + NS < 14:
            issue(jp + NS)
    k("s_lshl_b32 s10, s6, 2")
    k("s_add_u32 s45, s10, s3")
    k("s_lshl_b32 s10, s45, 4")
    k("s_lshl_b32 s11, s7, 1")
    k("s_add_u32 s10, s10, s11")
    k("s_lshl_b32 s50, s10, 10")
    k(f"s_add_u32 s10, s50, {XIN}")
    add64(k, 52, S_WS, "s10")
    k("global_load_dwordx4 v[32:35], v5, s[52:53]")
    k("global_load_dwordx4 v[36:39], v5, s[52:53] offset:1024")
    k("s_lshl_b32 s10, s7, 7")
    add64(k, 54, S_B2, "s10")
    k("v_lshlrev_b32 v20, 3, v4")
    for nt in range(4):
        k(f"global_load_dwordx2 {vr(40+nt*2,2)}, v20, s[54:55] offset:{nt*32}")
    k("s_barrier")
    k("s_lshl_b32 s10, s3, 12")
    k("v_add_u32 v20, s10, v5")
    for d in range(4):
        ld = k.newlabel("rd")
        k(f"s_cmp_eq_u32 s3, {d}")
        k(f"s_cbranch_scc1 {ld}")
        k.begin_cond()
        for nt in range(4):
            k(f"ds_write_b128 v20, {vr(acc(d,nt),4)} offset:{d*16384+nt*1024}")
        k.end_cond()
        k.label(ld)
    FIN = 64
    for d in range(4):
        ld = k.newlabel("ow")
        k(f"s_cmp_lg_u32 s3, {d}")
        k(f"s_cbranch_scc1 {ld}")
        k.begin_cond()
        for nt in range(4):
            for j in range(4):
                k(f"v_mov_b32 v{FIN+nt*4+j}, v{acc(d,nt)+j}")
        k.end_cond()
        k.label(ld)
    k("s_waitcnt lgkmcnt(0)")
    k("s_barrier")
    k("s_lshl_b32 s10, s3, 14")
    k("v_add_u32 v20, s10, v5")
    RCV = 80
    for s_ in range(1, 4):
        k(f"s_add_u32 s10, s3, {s_}")
        k("s_and_b32 s10, s10, 3")
        k("s_lshl_b32 s10, s10, 12")
        k(f"v_add_u32 v{20+s_}, s10, v20")
        for q in range(4):
            k(f"ds_read_b128 {vr(RCV+((s_-1)*4+q)*4,4)}, v{20+s_} offset:{q*1024}")
    k("s_waitcnt lgkmcnt(0)")
    for s_ in range(3):
        for q in range(4):
            for j in range(0, 4, 2):
                k(f"v_pk_add_f32 {vr(FIN+q*4+j,2)}, {vr(FIN+q*4+j,2)}, {vr(RCV+(s_*4+q)*4+j,2)}")
    k("s_waitcnt vmcnt(0)")
    OUTR = 48
    for q2 in range(8):
        f = FIN + q2 * 2
        k(f"v_cvt_pk_bf16_f32 v24, v{f}, v{f+1}")
        k(f"v_lshlrev_b32 v{f}, 16, v24")
        k(f"v_and_b32 v{f+1}, 0xffff0000, v24")
        k(f"v_lshlrev_b32 v26, 16, v{40+q2}")
        k(f"v_and_b32 v27, 0xffff0000, v{40+q2}")
        k(f"v_pk_add_f32 {vr(f,2)}, {vr(f,2)}, v[26:27]")
        k(f"v_cvt_pk_bf16_f32 v24, v{f}, v{f+1}")
        k(f"v_lshlrev_b32 v{f}, 16, v24")
        k(f"v_and_b32 v{f+1}, 0xffff0000, v24")
        k(f"v_lshlrev_b32 v26, 16, v{32+q2}")
        k(f"v_and_b32 v27, 0xffff0000, v{32+q2}")
        k(f"v_pk_add_f32 {vr(f,2)}, {vr(f,2)}, v[26:27]")
        k(f"v_cvt_pk_bf16_f32 v{OUTR+q2}, v{f}, v{f+1}")
    if a:
        k(f"s_add_u32 s10, s50, {L.X2F}")
        add64(k, 54, S_WS, "s10")
        k(f"global_store_dwordx4 v5, {vr(OUTR,4)}, s[54:55]")
        k(f"global_store_dwordx4 v5, {vr(OUTR+4,4)}, s[54:55] offset:1024")
        k("s_lshr_b32 s12, s7, 1")
        k("s_lshl_b32 s11, s12, 8")
        k("s_and_b32 s12, s7, 1")
        k("s_lshl_b32 s12, s12, 3")
        k("s_add_u32 s11, s11, s12")
        k("s_lshl_b32 s12, s45, 11")
        k("s_add_u32 s11, s11, s12")
        k(f"s_add_u32 s11, s11, {L.ST2}")
        add64(k, 56, S_WS, "s11")
        stats_from_packed(k, OUTR, 8, 24, 25, 10)
        allreduce_g(k, 24, 28, "v_add_f32")
        allreduce_g(k, 25, 29, "v_add_f32")
        k("s_mov_b64 exec, 0xffff")
        k("global_store_dwordx2 v5, v[24:25], s[56:57]")
        k("s_mov_b64 exec, -1")
    else:
        k("s_lshl_b32 s10, s3, 12")
        k("s_add_u32 s10, s10, 65536")
        k("v_mul_u32_u24 v20, 144, v3")
        k("v_lshl_add_u32 v20, v4, 3, v20")
        k("v_add_u32 v20, s10, v20")
        for nt in range(4):
            k(f"ds_write_b64 v20, {vr(OUTR+nt*2,2)} offset:{nt*32}")
        k("v_lshrrev_b32 v21, 2, v1")
        k("v_and_b32 v22, 3, v1")
        k("v_mul_u32_u24 v23, 144, v21")
        k("v_lshl_add_u32 v23, v22, 4, v23")
        k("v_add_u32 v23, s10, v23")
        k("s_waitcnt lgkmcnt(0)")
        k("ds_read_b128 v[24:27], v23")
        k("ds_read_b128 v[28:31], v23 offset:64")
        k("v_lshlrev_b32 v21, 10, v21")
        k("v_lshl_add_u32 v21, v22, 4, v21")
        k("s_lshl_b32 s10, s45, 14")
        k("s_lshl_b32 s11, s7, 7")
        k("s_add_u32 s10, s10, s11")
        add64(k, 54, S_OUT, "s10")
        k("s_waitcnt lgkmcnt(0)")
        k("global_store_dwordx4 v21, v[24:27], s[54:55]")
        k("global_store_dwordx4 v21, v[28:31], s[54:55] offset:64")
    return k, NS * 4096 * 4
```

```python
from k_common import *

ACT, ACC, CS, FRAG, ONES = 32, 96, 152, 160, 188
XCH, CSR, STR = 32768, 90112, 106496

def act(i, s): return ACT + (i * 8 + s) * 4

def gen_g8(name, kind, layer):
    k1 = kind == "k1"
    first = (k1 and layer == "a")
    NT = 6 if k1 else 7
    KSB = NT * 1024
    NDMA = NT
    def acc(i, nt): return ACC + (i * 7 + nt) * 4
    k = Kernel(name)
    prologue(k)
    k("s_and_b32 s4, s3, 3")
    k("s_lshr_b32 s5, s3, 2")
    k("s_and_b32 s8, s2, 7")
    k("s_lshr_b32 s9, s2, 3")
    k("s_lshr_b32 s6, s8, 1")
    k("s_lshl_b32 s6, s6, 2")
    k("s_and_b32 s10, s9, 3")
    k("s_add_u32 s6, s6, s10")
    k("s_and_b32 s7, s8, 1")
    k("s_lshl_b32 s7, s7, 3")
    k("s_lshr_b32 s10, s9, 2")
    k("s_add_u32 s7, s7, s10")
    k("v_and_b32 v3, 15, v1")
    k("v_lshrrev_b32 v4, 4, v1")
    k("v_lshlrev_b32 v5, 4, v1")
    k("v_lshrrev_b32 v6, 2, v3")
    k("v_and_b32 v7, 3, v3")
    k("v_lshl_add_u32 v8, v4, 2, v6")
    for j in range(4):
        k(f"v_mov_b32 v{ONES+j}, 0x3f803f80")
    if k1:
        k("v_lshlrev_b32 v9, 6, v8")
        k("v_lshl_add_u32 v9, v7, 3, v9")
        k("v_and_b32 v10, 1, v4")
        k("v_lshlrev_b32 v10, 5, v10")
        k(f"s_mul_i32 s10, s5, {8*KSB}")
        k("v_add_u32 v9, s10, v9")
        k("v_add_u32 v11, v9, v10")
        k("v_xor_b32 v10, 32, v10")
        k("v_add_u32 v12, v9, v10")
    else:
        k("v_mul_u32_u24 v9, 224, v8")
        k("v_lshl_add_u32 v9, v7, 3, v9")
        k(f"s_mul_i32 s10, s5, {8*KSB}")
        k("v_add_u32 v11, s10, v9")
    if k1:
        k("v_lshrrev_b32 v14, 2, v1")
        k("v_and_b32 v15, 3, v1")
        k("v_and_b32 v16, 1, v4")
        k("v_lshlrev_b32 v16, 1, v16")
        k("v_xor_b32 v15, v15, v16")
        k("s_and_b32 s10, s3, 1")
        if first:
            k("v_and_b32 v14, 3, v14")
            k("v_lshl_add_u32 v14, v4, 3, v14")
            k("s_lshl_b32 s10, s10, 2")
        else:
            k("s_lshl_b32 s10, s10, 4")
        k("v_add_u32 v14, s10, v14")
        k("v_mul_u32_u24 v13, 3072, v14")
        k("v_lshl_add_u32 v13, v15, 4, v13")
        k("s_lshr_b32 s10, s3, 1")
        k("s_lshl_b32 s10, s10, 10")
        k("s_lshl_b32 s11, s7, 6")
        k("s_add_u32 s10, s10, s11")
        STEPB = 32 * 3072
        WPTR = S_WQKV
    else:
        k("s_lshl_b32 s10, s3, 6")
        k("v_add_u32 v14, s10, v1")
        k("v_mul_u32_u24 v15, 4682, v14")
        k("v_lshrrev_b32 v15, 16, v15")
        k("v_mul_u32_u24 v16, 14, v15")
        k("v_sub_u32 v16, v14, v16")
        k("v_mul_u32_u24 v13, 3584, v15")
        k("v_lshl_add_u32 v13, v16, 4, v13")
        k("s_mul_i32 s10, s7, 224")
        STEPB = 32 * 3584
        WPTR = S_W1
    k("s_waitcnt lgkmcnt(0)")
    add64(k, 40, WPTR, "s10")
    add64(k, 42, 40, 8 * STEPB)
    k("s_lshl_b32 s44, s3, 10")
    k("s_lshl_b32 s10, s6, 3")
    k("s_lshl_b32 s11, s4, 1")
    k("s_add_u32 s45, s10, s11")
    if first:
        k("s_lshl_b32 s10, s45, 14")
        k("s_lshl_b32 s11, s5, 9")
        k("s_add_u32 s10, s10, s11")
        add64(k, 46, S_X, "s10")
        k("v_lshrrev_b32 v14, 2, v1")
        k("v_lshrrev_b32 v15, 5, v1")
        k("v_mul_u32_u24 v15, 3, v15")
        k("v_and_b32 v16, 3, v1")
        k("v_xor_b32 v16, v16, v15")
        k("v_lshlrev_b32 v17, 10, v14")
        k("v_lshl_add_u32 v17, v16, 4, v17")
        k("v_add_u32 v18, 16384, v17")
        k("s_mul_i32 s48, s3, 6144")
        k("s_add_u32 s48, s48, 98304")
        k("v_lshrrev_b32 v15, 3, v3")
        k("v_mul_u32_u24 v15, 3, v15")
        k("v_xor_b32 v15, v15, v4")
        k("v_lshlrev_b32 v19, 6, v3")
        k("v_lshl_add_u32 v19, v15, 4, v19")
        k("v_add_u32 v19, s48, v19")
        for j in range(4):
            k(f"v_mov_b32 v{20+j}, 0")
    else:
        XOFF = {("k1", "b"): L.X2F, ("k3", "a"): L.X1F, ("k3", "b"): L.X3F}[(kind, layer)]
        k("s_lshl_b32 s10, s45, 14")
        k("s_lshl_b32 s11, s5, 13")
        k("s_add_u32 s10, s10, s11")
        k(f"s_add_u32 s10, s10, {XOFF}")
        add64(k, 46, S_WS, "s10")
        k("v_add_u32 v17, 4096, v5")
        k("v_add_u32 v18, 16384, v5")
        k("v_add_u32 v19, 20480, v5")
        STOFF = {("k1", "b"): L.ST2, ("k3", "a"): L.ST1, ("k3", "b"): L.ST3}[(kind, layer)]
        k("s_add_u32 s10, s45, s5")
        k("s_lshl_b32 s10, s10, 11")
        k(f"s_add_u32 s10, s10, {STOFF}")
        add64(k, 50, S_WS, "s10")
        k("global_load_dwordx4 v[192:195], v5, s[50:51]")
        if not k1:
            k("global_load_dwordx4 v[196:199], v5, s[50:51] offset:1024")
    AUX = 147456 if k1 else 114688
    lab = k.newlabel("aux")
    k("s_cmp_lg_u32 s3, 7")
    k(f"s_cbranch_scc1 {lab}")
    k.begin_cond()
    k(f"s_mov_b32 m0, {AUX}")
    if k1:
        k("s_lshl_b32 s10, s7, 10")
        add64(k, 52, S_WPHI, "s10")
        k("global_load_lds_dwordx4 v5, s[52:53]")
        if first:
            lab2 = k.newlabel("nz")
            k("s_cmp_lg_u32 s6, 0")
            k(f"s_cbranch_scc1 {lab2}")
            k("v_mov_b32 v200, 0")
            k("v_mov_b32 v201, 0")
            k("v_mov_b32 v202, 0")
            k("v_mov_b32 v203, 0")
            k("s_lshl_b32 s10, s7, 12")
            k(f"s_add_u32 s10, s10, {L.KVA}")
            add64(k, 54, S_WS, "s10")
            for j in range(4):
                k(f"global_store_dwordx4 v5, v[200:203], s[54:55] offset:{j*1024} sc1")
            k("s_lshl_b32 s10, s7, 8")
            k(f"s_add_u32 s10, s10, {L.ZA}")
            add64(k, 54, S_WS, "s10")
            k("v_lshlrev_b32 v204, 2, v1")
            k("global_store_dword v204, v200, s[54:55] sc1")
            k("s_waitcnt vmcnt(0)")
            k("s_lshl_b32 s10, s7, 2")
            k("v_mov_b32 v204, s10")
            k("v_mov_b32 v205, 1")
            k("global_store_dword v204, v205, s[36:37] sc1")
            k.label(lab2)
    else:
        k("s_mul_i32 s10, s7, 224")
        add64(k, 52, S_B1, "s10")
        k("s_mov_b64 exec, 0x3fff")
        k("global_load_lds_dwordx4 v5, s[52:53]")
        k("s_mov_b64 exec, -1")
    k("s_waitcnt vmcnt(0)")
    k.end_cond()
    k.label(lab)

    def issue_w(s):
        labw = k.newlabel("w")
        k(f"s_cmp_ge_u32 s3, {NDMA}")
        k(f"s_cbranch_scc1 {labw}")
        k.begin_cond()
        k(f"s_add_u32 m0, s44, {s*KSB}")
        k("global_load_lds_dwordx4 v13, s[40:41]")
        k(f"s_add_u32 m0, s44, {(8+s)*KSB}")
        k("global_load_lds_dwordx4 v13, s[42:43]")
        add64(k, 40, 40, STEPB)
        add64(k, 42, 42, STEPB)
        k.end_cond()
        k.label(labw)

    def issue_act(s):
        if first:
            slot = s % 3
            k(f"s_add_u32 m0, s48, {slot*2048}")
            k(f"global_load_lds_dwordx4 v17, s[46:47]")
            k(f"s_add_u32 m0, s48, {slot*2048+1024}")
            k(f"global_load_lds_dwordx4 v18, s[46:47]")
            add64(k, 46, 46, 64)
        else:
            for i in range(2):
                vo = [5, 17, 18, 19][i * 2 + (s >> 2)]
                k(f"global_load_dwordx4 {vr(act(i,s),4)}, v{vo}, s[46:47] offset:{(s&3)*1024}")

    PD = 3 if first else 8
    for s in range(PD):
        issue_act(s)
        issue_w(s)

    for s in range(8):
        rem = min(PD - 1, 7 - s)
        la, lb = k.newlabel("wa"), k.newlabel("wb")
        k(f"s_cmp_ge_u32 s3, {NDMA}")
        k(f"s_cbranch_scc1 {la}")
        k(f"s_waitcnt vmcnt({rem*4})")
        k(f"s_branch {lb}")
        k.label(la)
        k(f"s_waitcnt vmcnt({rem*2})")
        k.label(lb)
        k("s_barrier")
        nl = 0
        if first:
            slot = s % 3
            for i in range(2):
                k(f"ds_read_b128 {vr(act(i,s),4)}, v19 offset:{slot*2048+i*1024}")
        for nt in range(NT):
            for t1 in range(2):
                if k1:
                    k(f"ds_read_b64_tr_b16 {vr(FRAG+nt*4+t1*2,2)}, v{11+(nt&1)} offset:{s*KSB+(nt>>1)*2048+t1*1024}")
                else:
                    k(f"ds_read_b64_tr_b16 {vr(FRAG+nt*4+t1*2,2)}, v11 offset:{s*KSB+t1*3584+nt*32}")
        if first:
            k(f"s_waitcnt lgkmcnt({2*NT})")
            if s + PD < 8:
                issue_act(s + PD)
                issue_w(s + PD)
            for i in range(2):
                for j in range(4):
                    k(f"v_dot2_f32_bf16 v{20+i}, v{act(i,s)+j}, v{ONES}, v{20+i}")
                    k(f"v_dot2_f32_bf16 v{22+i}, v{act(i,s)+j}, v{act(i,s)+j}, v{22+i}")
        for nt in range(NT):
            k(f"s_waitcnt lgkmcnt({2*(NT-1-nt)})")
            for i in range(2):
                c = "0" if s == 0 else vr(acc(i, nt), 4)
                k(f"v_mfma_f32_16x16x32_bf16 {vr(acc(i,nt),4)}, {vr(FRAG+nt*4,4)}, {vr(act(i,s),4)}, {c}")
            lc = k.newlabel("cs")
            k(f"s_cmp_lg_u32 s4, {nt&3}")
            k(f"s_cbranch_scc1 {lc}")
            k.begin_cond()
            cr = CS + (nt >> 2) * 4
            c = "0" if s == 0 else vr(cr, 4)
            k(f"v_mfma_f32_16x16x32_bf16 {vr(cr,4)}, {vr(FRAG+nt*4,4)}, {vr(ONES,4)}, {c}")
            k.end_cond()
            k.label(lc)

    if first:
        lx = k.newlabel("xf")
        k("s_lshr_b32 s10, s7, 2")
        k("s_cmp_lg_u32 s10, s4")
        k(f"s_cbranch_scc1 {lx}")
        k("s_and_b32 s10, s7, 1")
        k("s_cmp_lg_u32 s10, s5")
        k(f"s_cbranch_scc1 {lx}")
        k.begin_cond()
        k("v_lshlrev_b32 v24, 1, v4")
        k("v_and_b32 v24, 3, v24")
        k("v_lshl_add_u32 v24, v24, 4, v3")
        k("v_lshlrev_b32 v24, 4, v24")
        k("v_lshrrev_b32 v25, 1, v4")
        k("v_lshl_add_u32 v24, v25, 3, v24")
        k("v_add_u32 v25, 4096, v24")
        k("s_lshr_b32 s10, s7, 1")
        k("s_and_b32 s10, s10, 1")
        k("s_add_u32 s11, s45, s10")
        k("s_lshl_b32 s11, s11, 14")
        k("s_lshl_b32 s12, s5, 13")
        k("s_add_u32 s11, s11, s12")
        k(f"s_add_u32 s11, s11, {L.XF0}")
        add64(k, 54, S_WS, "s11")
        l1, l2 = k.newlabel("xi"), k.newlabel("xe")
        k("s_cmp_eq_u32 s10, 1")
        k(f"s_cbranch_scc1 {l1}")
        for i in range(2):
            if i == 1:
                k.label(l1)
            for s in range(8):
                vo = 24 + (s >> 2)
                k(f"global_store_dwordx2 v{vo}, {vr(act(i,s),2)}, s[54:55] offset:{(s&3)*1024}")
                k(f"global_store_dwordx2 v{vo}, {vr(act(i,s)+2,2)}, s[54:55] offset:{(s&3)*1024+256}")
            if i == 0:
                k(f"s_branch {l2}")
        k.label(l2)
        k.end_cond()
        k.label(lx)

    k("s_barrier")
    k(f"s_mul_i32 s10, s3, {NT*1024}")
    k(f"s_add_u32 s10, s10, {XCH}")
    k("v_add_u32 v24, s10, v5")
    k("s_xor_b32 s11, s3, 4")
    k(f"s_mul_i32 s10, s11, {NT*1024}")
    k(f"s_add_u32 s10, s10, {XCH}")
    k("v_add_u32 v25, s10, v5")
    k("s_lshl_b32 s10, s5, 13")
    k("s_lshl_b32 s11, s4, 10")
    k("s_add_u32 s10, s10, s11")
    k(f"s_add_u32 s10, s10, {CSR}")
    k("v_add_u32 v26, s10, v5")
    k(f"ds_write_b128 v26, {vr(CS,4)}")
    k(f"ds_write_b128 v26, {vr(CS+4,4)} offset:4096")
    if first:
        for j in range(4):
            allreduce_g(k, 20 + j, 27, "v_add_f32")
    l1, l2 = k.newlabel("xh"), k.newlabel("xh")
    k("s_cmp_eq_u32 s5, 1")
    k(f"s_cbranch_scc1 {l1}")
    for kh in range(2):
        if kh == 1:
            k.label(l1)
        k.begin_cond()
        for nt in range(NT):
            k(f"ds_write_b128 v24, {vr(acc(1-kh,nt),4)} offset:{nt*1024}")
        if first:
            k(f"v_mov_b32 v28, v{20+(1-kh)}")
            k(f"v_mov_b32 v29, v{22+(1-kh)}")
            k(f"v_mov_b32 v30, v{20+kh}")
            k(f"v_mov_b32 v31, v{22+kh}")
        if kh == 1:
            for nt in range(NT):
                for j in range(4):
                    k(f"v_mov_b32 v{acc(0,nt)+j}, v{acc(1,nt)+j}")
        k.end_cond()
        if kh == 0:
            k(f"s_branch {l2}")
    k.label(l2)
    if first:
        k("s_lshl_b32 s10, s3, 9")
        k(f"s_add_u32 s10, s10, {STR}")
        k("v_lshl_add_u32 v26, v1, 3, s10")
        k("ds_write_b64 v26, v[28:29]")
        k("s_xor_b32 s11, s3, 4")
        k("s_lshl_b32 s10, s11, 9")
        k(f"s_add_u32 s10, s10, {STR}")
        k("v_lshl_add_u32 v26, v1, 3, s10")
    k("s_waitcnt lgkmcnt(0)")
    k("s_barrier")
    R = acc(1, 0)
    for nt in range(NT):
        k(f"ds_read_b128 {vr(R+nt*4,4)}, v25 offset:{nt*1024}")
    k(f"v_add_u32 v27, {CSR}, v5")
    for nt in range(NT):
        k(f"ds_read_b128 {vr(ACT+nt*4,4)}, v27 offset:{nt*1024}")
    if first:
        k("ds_read_b64 v[28:29], v26")
    k(f"s_waitcnt lgkmcnt({NT+(1 if first else 0)})")
    for nt in range(NT):
        for j in range(0, 4, 2):
            k(f"v_pk_add_f32 {vr(acc(0,nt)+j,2)}, {vr(acc(0,nt)+j,2)}, {vr(R+nt*4+j,2)}")
    for nt in range(NT):
        k(f"ds_read_b128 {vr(ACT+32+nt*4,4)}, v27 offset:{8192+nt*1024}")
    if first:
        k(f"s_waitcnt lgkmcnt({NT})")
        k("v_add_f32 v20, v30, v28")
        k("v_add_f32 v21, v31, v29")
    else:
        k("v_add_f32 v20, v192, v194")
        k("v_add_f32 v21, v193, v195")
        if not k1:
            k("v_add_f32 v22, v196, v198")
            k("v_add_f32 v23, v197, v199")
            k("v_add_f32 v20, v20, v22")
            k("v_add_f32 v21, v21, v23")
        allreduce_g(k, 20, 27, "v_add_f32")
        allreduce_g(k, 21, 28, "v_add_f32")
    ln_scalars(k, 20, 21, 22, 23, 24, 25, 26, 27, double=not k1)
    k("s_waitcnt lgkmcnt(0)")
    for nt in range(NT):
        for j in range(0, 4, 2):
            k(f"v_pk_add_f32 {vr(ACT+nt*4+j,2)}, {vr(ACT+nt*4+j,2)}, {vr(ACT+32+nt*4+j,2)}")
    for nt in range(NT):
        for j in range(0, 4, 2):
            a_ = acc(0, nt) + j
            k(f"v_pk_mul_f32 {vr(a_,2)}, {vr(a_,2)}, v[22:23] op_sel_hi:[1,0]")
            k(f"v_pk_fma_f32 {vr(a_,2)}, {vr(ACT+nt*4+j,2)}, v[22:23], {vr(a_,2)} op_sel:[0,1,0] op_sel_hi:[1,1,1] neg_lo:[1,0,0] neg_hi:[1,0,0]")
    k("s_add_u32 s45, s45, s5")
    if k1:
        epi_k1(k, layer, first, acc)
    else:
        epi_k3(k, layer, acc, AUX)
    return k, (145 * 1024 if k1 else 113 * 1024)


def epi_k3(k, layer, acc, AUX):
    HOFF = L.HFA if layer == "a" else L.HFB
    k(f"v_lshl_add_u32 v24, v4, 3, 0")
    k(f"v_add_u32 v24, {AUX}, v24")
    BI = ACT
    for nt in range(7):
        k(f"ds_read_b64 {vr(BI+nt*2,2)}, v24 offset:{nt*32}")
    k("s_lshr_b32 s10, s7, 1")
    k("s_mul_i32 s10, s10, 7")
    k("s_and_b32 s11, s7, 1")
    k("s_mul_i32 s12, s11, 3")
    k("s_add_u32 s12, s12, s10")
    k("s_mul_i32 s13, s45, 56")
    k("s_add_u32 s12, s12, s13")
    k("s_lshl_b32 s12, s12, 10")
    k(f"s_add_u32 s12, s12, {HOFF}")
    add64(k, 54, S_WS, "s12")
    k("s_add_u32 s10, s10, s13")
    k("s_add_u32 s10, s10, 6")
    k("s_lshl_b32 s10, s10, 10")
    k("s_lshl_b32 s11, s11, 3")
    k("s_add_u32 s10, s10, s11")
    k(f"s_add_u32 s10, s10, {HOFF}")
    add64(k, 56, S_WS, "s10")
    K0 = 2 * 0.7978845608028654 * LOG2E
    K1 = K0 * 0.044715
    k(f"v_mov_b32 v26, {f32hex(-K1)}")
    k(f"v_mov_b32 v27, {f32hex(-K0)}")
    k("v_mov_b32 v28, 1.0")
    k("s_waitcnt lgkmcnt(0)")
    OUT = ACT + 32
    T = 200
    for nt in range(7):
        for j in range(0, 4, 2):
            a_ = acc(0, nt) + j
            t = T + ((nt * 2 + j // 2) % 4) * 8
            k(f"v_cvt_pk_bf16_f32 v{t}, v{a_}, v{a_+1}")
            k(f"v_lshlrev_b32 v{t+2}, 16, v{BI+nt*2+j//2}")
            k(f"v_and_b32 v{t+3}, 0xffff0000, v{BI+nt*2+j//2}")
            k(f"v_lshlrev_b32 v{a_}, 16, v{t}")
            k(f"v_and_b32 v{a_+1}, 0xffff0000, v{t}")
            k(f"v_pk_add_f32 {vr(a_,2)}, {vr(a_,2)}, {vr(t+2,2)}")
            k(f"v_cvt_pk_bf16_f32 v{t}, v{a_}, v{a_+1}")
            k(f"v_lshlrev_b32 v{a_}, 16, v{t}")
            k(f"v_and_b32 v{a_+1}, 0xffff0000, v{t}")
            k(f"v_pk_mul_f32 {vr(t+2,2)}, {vr(a_,2)}, {vr(a_,2)}")
            k(f"v_pk_fma_f32 {vr(t+2,2)}, {vr(t+2,2)}, v[26:27], v[26:27] op_sel:[0,0,1] op_sel_hi:[1,0,1]")
            k(f"v_pk_mul_f32 {vr(t+2,2)}, {vr(t+2,2)}, {vr(a_,2)}")
            k(f"v_exp_f32 v{t+2}, v{t+2}")
            k(f"v_exp_f32 v{t+3}, v{t+3}")
            k(f"v_pk_add_f32 {vr(t+2,2)}, {vr(t+2,2)}, v[28:29] op_sel_hi:[1,0]")
            k(f"v_rcp_f32 v{t+2}, v{t+2}")
            k(f"v_rcp_f32 v{t+3}, v{t+3}")
            k(f"v_pk_mul_f32 {vr(t+2,2)}, {vr(t+2,2)}, {vr(a_,2)}")
            k(f"v_cvt_pk_bf16_f32 v{OUT+nt*2+j//2}, v{t+2}, v{t+3}")
        if nt in (1, 3, 5):
            k(f"global_store_dwordx4 v5, {vr(OUT+(nt-1)*2,4)}, s[54:55] offset:{(nt//2)*1024}")
    k(f"global_store_dwordx2 v5, {vr(OUT+12,2)}, s[56:57]")


def epi_k1(k, layer, first, acc):
    PHI = L.PHIQA if layer == "a" else L.PHIQB
    KV = L.KVA if layer == "a" else L.KVB
    ZZ = L.ZA if layer == "a" else L.ZB
    AUX = 147456
    if first:
        k("s_lshl_b32 s10, s7, 2")
        k("v_mov_b32 v250, s10")
        k("global_load_dword v251, v250, s[36:37] sc1")
    k("v_lshlrev_b32 v24, 5, v8")
    k("v_lshl_add_u32 v24, v7, 3, v24")
    k(f"v_add_u32 v24, {AUX}, v24")
    WP = ACT
    k(f"ds_read_b64_tr_b16 {vr(WP,2)}, v24")
    k(f"ds_read_b64_tr_b16 {vr(WP+2,2)}, v24 offset:512")
    P = ACT + 8
    for nt in range(6):
        for j in range(2):
            k(f"v_cvt_pk_bf16_f32 v{P+nt*2+j}, v{acc(0,nt)+2*j}, v{acc(0,nt)+2*j+1}")
    k("s_waitcnt lgkmcnt(0)")
    PQ = ACT + 24
    for nt in range(4):
        k(f"v_mfma_f32_16x16x16_bf16 {vr(PQ+nt*4,4)}, {vr(WP+(nt&1)*2,2)}, {vr(P+nt*2,2)}, 0")
    k("s_lshl_b32 s10, s4, 5")
    k("s_lshl_b32 s11, s5, 4")
    k("s_add_u32 s10, s10, s11")
    k("v_add_u32 v24, s10, v3")
    k("v_lshlrev_b32 v24, 5, v24")
    k("v_lshl_add_u32 v24, v4, 3, v24")
    for hh in range(2):
        k(f"ds_write_b64 v24, {vr(P+(4+hh)*2,2)} offset:{hh*12288+8192}")
    k("s_lshl_b32 s10, s45, 5")
    k("s_lshl_b32 s11, s7, 1")
    k("s_add_u32 s10, s10, s11")
    k("s_lshl_b32 s10, s10, 10")
    k(f"s_add_u32 s10, s10, {PHI}")
    add64(k, 54, S_WS, "s10")
    k(f"v_mov_b32 v25, {f32hex(LOG2E)}")
    PH = ACT + 40
    for nt in range(4):
        x = PQ + nt * 4
        t = 200 + nt * 12
        k(f"v_cvt_pk_bf16_f32 v{t}, v{x}, v{x+1}")
        k(f"v_cvt_pk_bf16_f32 v{t+1}, v{x+2}, v{x+3}")
        k(f"v_lshlrev_b32 v{x}, 16, v{t}")
        k(f"v_and_b32 v{x+1}, 0xffff0000, v{t}")
        k(f"v_lshlrev_b32 v{x+2}, 16, v{t+1}")
        k(f"v_and_b32 v{x+3}, 0xffff0000, v{t+1}")
        k(f"v_max3_f32 v{t}, v{x}, v{x+1}, v{x+2}")
        k(f"v_max_f32 v{t}, v{t}, v{x+3}")
        k(f"v_min3_f32 v{t+1}, v{x}, v{x+1}, v{x+2}")
        k(f"v_min_f32 v{t+1}, v{t+1}, v{x+3}")
    for nt in range(4):
        t = 200 + nt * 12
        allreduce_g(k, t, t + 2, "v_max_f32")
        allreduce_g(k, t + 1, t + 3, "v_min_f32")
    for nt in range(4):
        x = PQ + nt * 4
        t = 200 + nt * 12
        k(f"v_mul_f32 v{t}, v{t}, v25")
        k(f"v_mul_f32 v{t+1}, v{t+1}, v25")
        for j in range(4):
            k(f"v_fma_f32 v{t+4+j}, v{x+j}, v25, -v{t}")
            k(f"v_fma_f32 v{t+8+j}, -v{x+j}, v25, v{t+1}")
        for j in range(8):
            k(f"v_exp_f32 v{t+4+j}, v{t+4+j}")
        k(f"v_add_f32 v{t}, v{t+4}, v{t+5}")
        k(f"v_add_f32 v{t+1}, v{t+8}, v{t+9}")
        k(f"v_add_f32 v{t+2}, v{t+6}, v{t+7}")
        k(f"v_add_f32 v{t+3}, v{t+10}, v{t+11}")
        k(f"v_add_f32 v{t}, v{t}, v{t+2}")
        k(f"v_add_f32 v{t+1}, v{t+1}, v{t+3}")
    for nt in range(4):
        t = 200 + nt * 12
        allreduce_g(k, t, t + 2, "v_add_f32")
        allreduce_g(k, t + 1, t + 3, "v_add_f32")
    for nt in range(4):
        t = 200 + nt * 12
        k(f"v_rcp_f32 v{t}, v{t}")
        k(f"v_rcp_f32 v{t+1}, v{t+1}")
        for j in range(0, 4, 2):
            k(f"v_pk_mul_f32 {vr(t+4+j,2)}, {vr(t+4+j,2)}, {vr(t,2)} op_sel_hi:[1,0]")
            k(f"v_pk_mul_f32 {vr(t+8+j,2)}, {vr(t+8+j,2)}, {vr(t,2)} op_sel:[0,1] op_sel_hi:[1,1]")
        for j in range(4):
            k(f"v_cvt_pk_bf16_f32 v{PH+nt*4+j}, v{t+4+2*j}, v{t+5+2*j}")
        if nt < 2:
            k(f"global_store_dwordx4 v5, {vr(PH+nt*4,4)}, s[54:55] offset:{nt*1024}")
        else:
            hh = nt - 2
            k(f"ds_write_b64 v24, {vr(PH+nt*4,2)} offset:{hh*12288}")
            k(f"ds_write_b64 v24, {vr(PH+nt*4+2,2)} offset:{hh*12288+4096}")
    k("s_waitcnt lgkmcnt(0)")
    k("s_barrier")
    lend = f"L_end_{k.name}"
    k("s_cmp_ge_u32 s3, 4")
    k(f"s_cbranch_scc1 {lend}")
    k("s_lshr_b32 s10, s3, 1")
    k("s_and_b32 s11, s3, 1")
    k("s_mul_i32 s12, s10, 12288")
    k("s_lshl_b32 s13, s11, 12")
    k("s_add_u32 s13, s13, s12")
    k("v_lshlrev_b32 v24, 5, v8")
    k("v_lshl_add_u32 v24, v7, 3, v24")
    k("v_add_u32 v25, s13, v24")
    k("v_add_u32 v26, s12, v24")
    A = ACT; B = ACT + 16
    for ks in range(4):
        for t1 in range(2):
            k(f"ds_read_b64_tr_b16 {vr(A+ks*4+t1*2,2)}, v25 offset:{ks*1024+t1*512}")
            k(f"ds_read_b64_tr_b16 {vr(B+ks*4+t1*2,2)}, v26 offset:{8192+ks*1024+t1*512}")
    D = ACT + 32; Z = ACT + 36
    for ks in range(4):
        k(f"s_waitcnt lgkmcnt({(3-ks)*4})")
        c = "0" if ks == 0 else vr(D, 4)
        k(f"v_mfma_f32_16x16x32_bf16 {vr(D,4)}, {vr(A+ks*4,4)}, {vr(B+ks*4,4)}, {c}")
        c = "0" if ks == 0 else vr(Z, 4)
        k(f"v_mfma_f32_16x16x32_bf16 {vr(Z,4)}, {vr(ONES,4)}, {vr(A+ks*4,4)}, {c}")
    k("s_lshl_b32 s12, s7, 1")
    k("s_add_u32 s12, s12, s10")
    k("s_lshl_b32 s13, s12, 1")
    k("s_add_u32 s13, s13, s11")
    k("s_lshl_b32 s14, s13, 10")
    k(f"s_add_u32 s14, s14, {KV}")
    add64(k, 54, S_WS, "s14")
    k("s_lshl_b32 s14, s13, 6")
    k(f"s_add_u32 s14, s14, {ZZ}")
    add64(k, 56, S_WS, "s14")
    k("v_lshlrev_b32 v24, 2, v1")
    if first:
        lp = k.newlabel("poll")
        lq = k.newlabel("pollok")
        k.label(lp)
        k("s_waitcnt vmcnt(0)")
        k("v_readfirstlane_b32 s14, v251")
        k("s_cmp_eq_u32 s14, 1")
        k(f"s_cbranch_scc1 {lq}")
        k("s_sleep 2")
        k("global_load_dword v251, v250, s[36:37] sc1")
        k(f"s_branch {lp}")
        k.label(lq)
    for r in range(4):
        k(f"global_atomic_add_f32 v24, v{D+r}, s[54:55] offset:{r*256}")
    k("s_mov_b64 exec, 0xffff")
    k(f"global_atomic_add_f32 v24, v{Z}, s[56:57]")
    k("s_mov_b64 exec, -1")
```

```python
from asmlib import Kernel, vr, sr
import layout as L

S_X, S_WQKV, S_WPHI, S_WO, S_W1, S_B1, S_W2 = 16, 18, 20, 22, 26, 28, 30
S_B2, S_OUT, S_DBG, S_WS = 32, 34, 36, 38
LOG2E = 1.4426950408889634

def f32hex(x):
    import struct
    return "0x%08x" % struct.unpack("<I", struct.pack("<f", x))[0]

def prologue(k, nwg=256):
    k(f"s_cmp_ge_u32 s2, {nwg}")
    k(f"s_cbranch_scc1 L_end_{k.name}")
    k("s_load_dwordx16 s[16:31], s[0:1], 0")
    k("s_load_dwordx8 s[32:39], s[0:1], 64")
    k("v_lshrrev_b32 v2, 6, v0")
    k("v_and_b32 v1, 63, v0")
    k("v_readfirstlane_b32 s3, v2")

def add64(k, d, a, imm_or_sreg):
    k(f"s_add_u32 s{d}, s{a}, {imm_or_sreg}")
    k(f"s_addc_u32 s{d+1}, s{a+1}, 0")

def rbf(k, d, s):
    k(f"v_cvt_pk_bf16_f32 v{d}, v{s}, v{s}")
    k(f"v_lshlrev_b32 v{d}, 16, v{d}")

def allreduce_g(k, v, tmp, op):
    k(f"v_mov_b32 v{tmp}, v{v}")
    k(f"v_permlane32_swap_b32 v{v}, v{tmp}")
    k(f"{op} v{v}, v{v}, v{tmp}")
    k(f"v_mov_b32 v{tmp}, v{v}")
    k(f"v_permlane16_swap_b32 v{v}, v{tmp}")
    k(f"{op} v{v}, v{v}, v{tmp}")

def ln_scalars(k, vS, vQ, va, vc, t0, t1, t2, t3, double):
    k(f"v_mul_f32 v{vS}, {f32hex(1/512)}, v{vS}")
    k(f"v_mul_f32 v{vQ}, {f32hex(1/512)}, v{vQ}")
    k(f"v_fma_f32 v{vQ}, -v{vS}, v{vS}, v{vQ}")
    k(f"v_max_f32 v{vQ}, 0, v{vQ}")
    rbf(k, t0, vS)
    rbf(k, t1, vQ)
    k(f"v_add_f32 v{t1}, {f32hex(1e-5)}, v{t1}")
    rbf(k, t1, t1)
    k(f"v_sqrt_f32 v{t1}, v{t1}")
    rbf(k, t1, t1)
    k(f"v_rcp_f32 v{va}, v{t1}")
    if not double:
        k(f"v_mul_f32 v{vc}, v{t0}, v{va}")
        return
    k(f"v_sub_f32 v{t2}, v{vS}, v{t0}")
    k(f"v_mul_f32 v{t2}, v{t2}, v{va}")
    rbf(k, t2, t2)
    k(f"v_mul_f32 v{t3}, v{vQ}, v{va}")
    k(f"v_mul_f32 v{t3}, v{t3}, v{va}")
    rbf(k, t3, t3)
    k(f"v_add_f32 v{t3}, {f32hex(1e-5)}, v{t3}")
    rbf(k, t3, t3)
    k(f"v_sqrt_f32 v{t3}, v{t3}")
    rbf(k, t3, t3)
    k(f"v_rcp_f32 v{t3}, v{t3}")
    k(f"v_fma_f32 v{vc}, v{t0}, v{va}, v{t2}")
    k(f"v_mul_f32 v{vc}, v{vc}, v{t3}")
    k(f"v_mul_f32 v{va}, v{va}, v{t3}")

def descriptor(name, nvgpr, nsgpr=102):
    acc = (nvgpr + 3) // 4 * 4
    return f""".p2align 6
.amdhsa_kernel {name}
  .amdhsa_next_free_vgpr {nvgpr}
  .amdhsa_next_free_sgpr {nsgpr}
  .amdhsa_accum_offset {acc}
  .amdhsa_group_segment_fixed_size 0
  .amdhsa_kernarg_size 96
  .amdhsa_user_sgpr_count 2
  .amdhsa_user_sgpr_kernarg_segment_ptr 1
  .amdhsa_system_sgpr_workgroup_id_x 1
.end_amdhsa_kernel
"""

def wrap(k):
    return f""".globl {k.name}
.p2align 8
.type {k.name},@function
{k.name}:
{k.text()}
L_end_{k.name}:
    s_endpgm
"""
```

```python
import numpy as np
MB = 1 << 20
XF0 = 0
PHIQA = 2 * MB
PHIQB = 6 * MB
X1F = 10 * MB
X2F = 12 * MB
X3F = 14 * MB
HFA = 16 * MB
HFB = 24 * MB
KVA = 32 * MB
ZA = KVA + 65536
KVB = 32 * MB + 131072
ZB = KVB + 65536
ST1 = 33 * MB
ST2 = ST1 + 262144
ST3 = ST2 + 262144
WS_USED = 34 * MB

def fm_to_rows(a, C):
    P = C // 32
    a = a.reshape(128, P, 4, 16, 2, 4)
    a = a.transpose(0, 3, 1, 4, 2, 5)
    return a.reshape(2048, C)

def hf_to_rows(a):
    a = a.reshape(128, 8, 7, 4, 16, 2, 4)
    out = np.zeros((128, 16, 8, 14, 4, 4), dtype=a.dtype)
    for j in range(7):
        for half in range(2):
            if j < 3: nt = 2 * j + half
            elif j < 6: nt = 7 + 2 * (j - 3) + half
            else: nt = 6 + 7 * half
            out[:, :, :, nt, :, :] = a[:, :, j, :, :, half, :].transpose(0, 3, 1, 2, 4)
    return out.reshape(2048, 1792)
```

```python
import sys
from k_common import *
from g8 import gen_g8
from g4 import gen_k2, gen_k4
NAME = "interleave_layers__linear_kernel_hedgehog__mixer_channel_mlp__prompt"
import os
from asmlib import Kernel
Kernel.STAMPS = bool(os.environ.get("STAMPS"))
def main(out):
    ks = []
    for layer in "ab":
        ks.append((gen_g8(f"k1{layer}_kernel", "k1", layer), 512))
        ks.append((gen_k2(f"k2{layer}_kernel", layer), 256))
        ks.append((gen_g8(f"k3{layer}_kernel", "k3", layer), 512))
        ks.append((gen_k4(f"k4{layer}_kernel", layer), 256))
    head = open(f"cdna_kernels/{NAME}.s.ref").read().split("; Override launch")[0]
    s = head
    for (k, lds), bs in ks:
        s += f"; @launch kernel={k.name} grid=(256,1,1) block=({bs},1,1) lds={lds}\n"
    s += '.amdgcn_target "amdgcn-amd-amdhsa--gfx950"\n.text\n'
    for (k, lds), bs in ks:
        s += wrap(k)
    s += '.section .rodata,"a"\n'
    for (k, lds), bs in ks:
        s += descriptor(k.name, 256)
    open(out, "w").write(s)
main(sys.argv[1] if len(sys.argv) > 1 else f"cdna_kernels/{NAME}.s")
```

```python
import re

TRANS = ("v_exp_f32", "v_log_f32", "v_rcp_f32", "v_rsq_f32", "v_sqrt_f32", "v_sin_f32", "v_cos_f32")

_reg_re = re.compile(r"^(-|abs\()?\|?([vsa])(?:(\d+)|\[(\d+):(\d+)\])\|?\)?$")


def regs_of(tok):
    tok = tok.strip()
    if tok in ("vcc",):
        return ("s", {106, 107})
    if tok == "vcc_lo":
        return ("s", {106})
    if tok == "vcc_hi":
        return ("s", {107})
    if tok == "exec":
        return ("s", {126, 127})
    if tok == "m0":
        return ("s", {124})
    m = _reg_re.match(tok)
    if not m:
        return None
    k = m.group(2)
    if m.group(3) is not None:
        return (k, {int(m.group(3))})
    return (k, set(range(int(m.group(4)), int(m.group(5)) + 1)))


class Ins:
    __slots__ = ("text", "mn", "kind", "vw", "vr", "sw", "sr", "passes", "srcc", "srcab", "wide_store",
                 "weight", "region", "dst_first", "dpp")


class Kernel:
    def __init__(self, name):
        self.name = name
        self.out = []
        self.hist = []
        self.region = 0
        self._nreg = 0
        self._lab = 0

    def newlabel(self, p="L"):
        self._lab += 1
        return f"{p}_{self.name}_{self._lab}"

    def label(self, name):
        self.out.append(f"{name}:")

    def comment(self, s):
        self.out.append(f"    ; {s}")

    def begin_cond(self):
        self._nreg += 1
        self.region = self._nreg

    def end_cond(self):
        self.region = 0

    STAMPS = False
    def stamp(self):
        if not Kernel.STAMPS:
            return
        i = getattr(self, "_nstamp", 0)
        self._nstamp = i + 1
        assert i < 16
        self(f"s_memtime s[{64+2*i}:{65+2*i}]")
        self("s_waitcnt lgkmcnt(0)")

    def dump_stamps(self, kidx, ws_sreg=38):
        if not Kernel.STAMPS:
            return
        n = getattr(self, "_nstamp", 0)
        self("s_mov_b64 exec, -1")
        self("s_lshl_b32 s10, s2, 3")
        self("s_add_u32 s10, s10, s3")
        self("s_lshl_b32 s10, s10, 7")
        self(f"s_add_u32 s10, s10, {(40+kidx)*1048576}")
        self(f"s_add_u32 s10, s{ws_sreg}, s10")
        self(f"s_addc_u32 s11, s{ws_sreg+1}, 0")
        self("v_mov_b32 v2, 0")
        for i in range(n):
            self(f"v_mov_b32 v3, s{64+2*i}")
            self(f"global_store_dword v2, v3, s[10:11] offset:{i*4}")

    def fence(self):
        self("s_nop 15")
        self("s_nop 3")

    def _parse(self, text):
        I = Ins()
        I.text = text
        body = text.split(";")[0].strip()
        parts = body.split(None, 1)
        mn = parts[0]
        I.mn = mn
        ops = []
        if len(parts) > 1:
            cur = ""
            depth = 0
            for ch in parts[1]:
                if ch in "[(":
                    depth += 1
                if ch in "])":
                    depth -= 1
                if ch == "," and depth == 0:
                    ops.append(cur.strip())
                    cur = ""
                else:
                    cur += ch
            ops.append(cur.strip())
        mods = []
        if ops:
            last = ops[-1].split()
            ops[-1] = last[0] if last else ""
            mods = last[1:]
        I.dpp = any(m.startswith(("row_", "quad_perm", "wave_")) for m in mods)
        vw, vr, sw, sr = set(), set(), set(), set()

        def add(tok, wr):
            r = regs_of(tok)
            if r is None:
                return
            k, s = r
            if k == "a":
                s = {x + 1000 for x in s}
                k = "v"
            if k == "v":
                (vw if wr else vr).update(s)
            else:
                (sw if wr else sr).update(s)

        I.passes = 0
        I.srcc = set()
        I.srcab = set()
        I.wide_store = set()
        I.weight = 1
        if mn.startswith("v_mfma"):
            I.kind = "mfma"
            I.passes = 8 if "32x32" in mn else 4
            add(ops[0], True)
            for o in ops[1:4]:
                add(o, False)
            for o in ops[1:3]:
                r = regs_of(o)
                if r:
                    I.srcab |= {x + (1000 if r[0] == "a" else 0) for x in r[1]}
            r = regs_of(ops[3])
            if r and r[0] in "va":
                I.srcc = {x + (1000 if r[0] == "a" else 0) for x in r[1]}
        elif mn.startswith("v_permlane") and "swap" in mn:
            I.kind = "valu"
            for o in ops[:2]:
                add(o, True)
                add(o, False)
        elif mn.startswith("v_cmp"):
            I.kind = "valu"
            add(ops[0], True)
            for o in ops[1:]:
                add(o, False)
        elif mn.startswith("v_"):
            I.kind = "valu"
            add(ops[0], True)
            start = 1
            if mn.startswith(("v_add_co", "v_addc_co", "v_sub_co", "v_subb_co", "v_subrev_co")):
                add(ops[1], True)
                start = 2
            for o in ops[start:]:
                add(o, False)
            if mn.startswith(("v_fmac", "v_pk_fmac", "v_dot2c")):
                add(ops[0], False)
            if mn.startswith("v_cndmask") and len(ops) == 3:
                sr.update({106, 107})
        elif mn.startswith("ds_read") or mn.startswith("ds_bpermute") or mn.startswith("ds_permute") or mn.startswith("ds_swizzle"):
            I.kind = "ds"
            add(ops[0], True)
            for o in ops[1:]:
                add(o, False)
        elif mn.startswith("ds_"):
            I.kind = "ds"
            for o in ops:
                add(o, False)
        elif mn.startswith("global_load_lds"):
            I.kind = "dma"
            for o in ops:
                add(o, False)
        elif mn.startswith("global_load"):
            I.kind = "vmem"
            add(ops[0], True)
            for o in ops[1:]:
                add(o, False)
        elif mn.startswith("global_store"):
            I.kind = "vmem"
            for o in ops:
                add(o, False)
            if "x4" in mn or "x3" in mn:
                r = regs_of(ops[1])
                I.wide_store = set(r[1])
        elif mn.startswith("global_atomic"):
            I.kind = "vmem"
            if "sc0" in mods:
                add(ops[0], True)
                for o in ops[1:]:
                    add(o, False)
            else:
                for o in ops:
                    add(o, False)
        elif mn.startswith("buffer_"):
            raise NotImplementedError(mn)
        elif mn == "s_nop":
            I.kind = "nop"
            I.weight = int(ops[0], 0) + 1
        elif mn.startswith("s_"):
            I.kind = "salu"
            if mn.startswith(("s_cmp", "s_cbranch", "s_branch", "s_waitcnt", "s_barrier", "s_endpgm", "s_setprio", "s_sleep")):
                for o in ops:
                    add(o, False)
            else:
                if ops:
                    add(ops[0], True)
                for o in ops[1:]:
                    add(o, False)
        else:
            raise ValueError("unknown instr " + text)
        I.vw, I.vr, I.sw, I.sr = vw, vr, sw, sr
        I.region = self.region
        return I

    def _need(self, P, C):
        n = 0
        pk, ck = P.kind, C.kind
        if pk == "valu":
            raw = P.vw & C.vr
            if ck == "mfma" and raw:
                n = max(n, 2)
            if ck == "valu":
                if raw and P.mn.startswith(TRANS) and not C.mn.startswith(TRANS):
                    n = max(n, 1)
                if raw and (C.mn.startswith("v_permlane") or C.dpp):
                    n = max(n, 2)
                if raw and C.mn.startswith(("v_readfirstlane", "v_readlane")):
                    n = max(n, 1)
                if P.sw & C.sr:
                    n = max(n, 4 if C.mn.startswith(("v_readlane", "v_writelane")) else 2)
                if P.mn.startswith("v_dot2"):
                    if (P.vw & (C.vr | C.vw)):
                        same = C.mn == P.mn
                        if not same:
                            n = max(n, 3)
                        else:
                            ops = C.text.split(None, 1)[1].split(",")
                            ab = set()
                            for o in ops[1:3]:
                                r = regs_of(o.strip().split()[0])
                                if r and r[0] == "v":
                                    ab |= r[1]
                            if P.vw & ab:
                                n = max(n, 3)
            if ck in ("vmem", "dma") and (P.sw & C.sr):
                n = max(n, 5)
            if P.mn.startswith("v_dot2") and ck in ("vmem", "ds", "dma", "mfma") and raw:
                n = max(n, 3)
        if pk == "mfma":
            big = {4: 8, 8: 12}[P.passes]
            if ck == "mfma":
                if P.vw & C.srcab:
                    n = max(n, big)
                if P.vw & C.srcc:
                    if C.srcc == P.vw and C.passes == P.passes:
                        pass
                    else:
                        n = max(n, P.passes + 2)
                if (P.vw & C.vw) and not (C.srcc == P.vw):
                    n = max(n, big)
            elif ck == "valu":
                if P.vw & (C.vr | C.vw):
                    n = max(n, big)
                if P.srcc & C.vw:
                    n = max(n, P.passes - 1)
            elif ck in ("vmem", "ds", "dma"):
                if P.vw & (C.vr | C.vw):
                    n = max(n, big)
                if P.srcc & C.vw:
                    n = max(n, P.passes - 1)
        if pk == "salu" and 124 in P.sw and ck == "dma":
            n = max(n, 1)
        if pk == "vmem" and P.wide_store:
            if P.wide_store & C.vw:
                n = max(n, 2 if ck in ("valu", "mfma") else 1)
        return n

    def __call__(self, text):
        C = self._parse(text)
        dist = 0
        need_extra = 0
        for P in reversed(self.hist[-40:]):
            req = self._need(P, C)
            if req > dist:
                need_extra = max(need_extra, req - dist)
            if P.region == 0 or P.region == C.region:
                dist += P.weight
            if dist >= 24:
                break
        while need_extra > 0:
            k = min(need_extra, 16)
            N = self._parse(f"s_nop {k-1}")
            self.hist.append(N)
            self.out.append(f"    s_nop {k-1}")
            need_extra -= k
        self.hist.append(C)
        self.out.append("    " + text)

    def text(self):
        return "\n".join(self.out)


def vr(a, n=1):
    return f"v{a}" if n == 1 else f"v[{a}:{a+n-1}]"


def sr(a, n=1):
    return f"s{a}" if n == 1 else f"s[{a}:{a+n-1}]"
```

```python
from k_common import *
import os
PERTURB = float(os.environ.get("PERTURB", "0"))

def stats_from_packed(k, packed, n, vS, vQ, ones):
    k(f"v_mov_b32 v{vS}, 0")
    k(f"v_mov_b32 v{vQ}, 0")
    for j in range(n):
        k(f"v_dot2_f32_bf16 v{vS}, v{packed+j}, v{ones}, v{vS}")
        k(f"v_dot2_f32_bf16 v{vQ}, v{packed+j}, v{packed+j}, v{vQ}")

def gen_k2(name, layer):
    a = layer == "a"
    PHI = L.PHIQA if a else L.PHIQB
    KV = L.KVA if a else L.KVB
    ZZ = L.ZA if a else L.ZB
    XIN = L.XF0 if a else L.X2F
    XOUT = L.X1F if a else L.X3F
    STO = L.ST1 if a else L.ST3
    k = Kernel(name)
    prologue(k)
    k("s_and_b32 s8, s2, 7")
    k("s_lshr_b32 s9, s2, 3")
    k("s_lshl_b32 s6, s8, 3")
    k("s_and_b32 s10, s9, 7")
    k("s_add_u32 s6, s6, s10")
    k("s_lshr_b32 s7, s9, 3")
    k("v_and_b32 v3, 15, v1")
    k("v_lshrrev_b32 v4, 4, v1")
    k("v_lshlrev_b32 v5, 4, v1")
    k("v_lshrrev_b32 v6, 2, v3")
    k("v_and_b32 v7, 3, v3")
    k("v_lshl_add_u32 v8, v4, 2, v6")
    k("v_lshlrev_b32 v9, 2, v1")
    k("v_mov_b32 v10, 0x3f803f80")
    KVR, PQ, ZR, ACC, OF, FR, TA = 32, 96, 160, 32, 192, 224, 16
    KT = 192
    k("s_waitcnt lgkmcnt(0)")
    k.stamp()
    k("s_lshl_b32 s10, s3, 10")
    k(f"s_add_u32 s10, s10, {ZZ}")
    add64(k, 40, S_WS, "s10")
    k("global_load_dwordx4 v[12:15], v5, s[40:41]")
    k("s_lshl_b32 s10, s3, 14")
    k(f"s_add_u32 s10, s10, {KV}")
    add64(k, 42, S_WS, "s10")
    k("v_add_u32 v16, 4096, v9")
    k("v_add_u32 v17, 8192, v9")
    k("v_add_u32 v18, 12288, v9")
    def kvload(h):
        for j in range(8):
            off = h * 2048 + j * 256
            vo = [9, 16, 17, 18][off >> 12]
            k(f"global_load_dword v{KVR+h*8+j}, v{vo}, s[42:43] offset:{off&4095}")
    k("s_lshl_b32 s10, s6, 6")
    k("s_lshl_b32 s11, s3, 3")
    k("s_add_u32 s10, s10, s11")
    k("s_lshl_b32 s10, s10, 10")
    k(f"s_add_u32 s10, s10, {PHI}")
    add64(k, 44, S_WS, "s10")
    k("v_add_u32 v19, 4096, v5")
    k("v_add_u32 v20, 32768, v5")
    k("v_add_u32 v21, 36864, v5")
    def pqload(h):
        for i in range(2):
            vo = [5, 19, 20, 21][i * 2 + (h >> 2)]
            k(f"global_load_dwordx4 {vr(PQ+(i*8+h)*4,4)}, v{vo}, s[44:45] offset:{(h&3)*1024}")
    for h in range(4):
        kvload(h)
        pqload(h)
    k("v_lshrrev_b32 v22, 1, v3")
    k("v_xor_b32 v23, v22, v4")
    k("v_xor_b32 v24, 4, v23")
    k("v_and_b32 v25, 1, v1")
    k("v_lshlrev_b32 v25, 4, v25")
    k("v_lshl_add_u32 v25, v4, 10, v25")
    k("v_lshl_add_u32 v23, v23, 5, v25")
    k("v_lshl_add_u32 v24, v24, 5, v25")
    k("v_add_u32 v24, 4096, v24")
    k("s_lshl_b32 s10, s3, 17")
    k("s_lshl_b32 s11, s7, 8")
    k("s_add_u32 s10, s10, s11")
    add64(k, 46, S_WO, "s10")
    k("s_lshl_b32 s48, s3, 15")
    k("s_waitcnt vmcnt(40)")
    k("v_cvt_pk_bf16_f32 v12, v12, v13")
    k("v_cvt_pk_bf16_f32 v13, v14, v15")
    k("s_lshl_b32 s10, s3, 9")
    k("s_add_u32 s49, s10, 131072")
    k("v_lshl_add_u32 v14, v1, 3, s49")
    k("ds_write_b64 v14, v[12:13]")
    for h in range(4, 8):
        if h == 6:
            k("s_waitcnt vmcnt(40)")
        kvload(h)
        pqload(h)
    k("v_lshl_add_u32 v14, v4, 3, s49")
    k("s_waitcnt lgkmcnt(0)")
    for h in range(8):
        k(f"ds_read_b64 {vr(ZR+h*4,2)}, v14 offset:{h*64}")
        k(f"ds_read_b64 {vr(ZR+h*4+2,2)}, v14 offset:{h*64+32}")
    TRA = 240
    k("v_and_b32 v26, 7, v8")
    k("v_lshlrev_b32 v27, 8, v8")
    k("v_lshl_add_u32 v27, v7, 3, v27")
    k("v_add_u32 v27, s48, v27")
    for nt in range(8):
        k(f"v_xor_b32 v28, {nt}, v26")
        k(f"v_lshl_add_u32 v{TRA+nt}, v28, 5, v27")
    k("s_lshl_b32 s10, s6, 5")
    k("s_lshl_b32 s11, s7, 2")
    k("s_add_u32 s10, s10, s11")
    k("s_add_u32 s10, s10, s3")
    k("s_lshl_b32 s50, s10, 10")
    k(f"s_add_u32 s10, s50, {XIN}")
    add64(k, 52, S_WS, "s10")
    def wodma(j0, j1):
        for j in range(j0, j1):
            k(f"s_add_u32 m0, s48, {j*1024}")
            k(f"global_load_lds_dwordx4 v{23+(j&1)}, s[46:47]")
            if j & 1:
                add64(k, 46, 46, 8192)
    ndma = 0
    k.stamp()
    k(f"v_mov_b32 v29, {f32hex(1e-6)}")
    for h in range(8):
        k(f"s_waitcnt vmcnt({min(63,(7-h)*10+ndma)})")
        if h == 0:
            k("s_waitcnt lgkmcnt(0)")
        if h in (0, 4, 7):
            k.stamp()
        for j in range(4):
            k(f"v_cvt_pk_bf16_f32 v{KT+h*4+j}, v{KVR+h*8+2*j}, v{KVR+h*8+2*j+1}")
        if h >= 3:
            n = {3: 4, 4: 6, 5: 6, 6: 8, 7: 8}[h]
            wodma(ndma, ndma + n)
            ndma += n
        for i in range(2):
            nm = 224 + i * 8
            k(f"v_mfma_f32_16x16x32_bf16 {vr(nm,4)}, {vr(KT+h*4,4)}, {vr(PQ+(i*8+h)*4,4)}, 0")
            k(f"v_mfma_f32_16x16x32_bf16 {vr(nm+4,4)}, {vr(ZR+h*4,4)}, {vr(PQ+(i*8+h)*4,4)}, 0")
        for i in range(2):
            nm = 224 + i * 8
            d = nm + 4
            k(f"v_cvt_pk_bf16_f32 v{d}, v{d}, v{d}")
            k(f"v_cvt_pk_bf16_f32 v{d+2}, v{nm}, v{nm+1}")
            k(f"v_cvt_pk_bf16_f32 v{d+3}, v{nm+2}, v{nm+3}")
            k(f"v_lshlrev_b32 v{d}, 16, v{d}")
            k(f"v_add_f32 v{d}, v{d}, v29")
            k(f"v_cvt_pk_bf16_f32 v{d}, v{d}, v{d}")
            k(f"v_lshlrev_b32 v{d}, 16, v{d}")
            k(f"v_rcp_f32 v{d}, v{d}")
            k(f"v_lshlrev_b32 v{nm}, 16, v{d+2}")
            k(f"v_and_b32 v{nm+1}, 0xffff0000, v{d+2}")
            k(f"v_lshlrev_b32 v{nm+2}, 16, v{d+3}")
            k(f"v_and_b32 v{nm+3}, 0xffff0000, v{d+3}")
            k(f"v_pk_mul_f32 {vr(nm,2)}, {vr(nm,2)}, {vr(d,2)} op_sel_hi:[1,0]")
            k(f"v_pk_mul_f32 {vr(nm+2,2)}, {vr(nm+2,2)}, {vr(d,2)} op_sel_hi:[1,0]")
            of = PQ + (i * 8 + (h & ~1)) * 4 + (h & 1) * 2
            k(f"v_cvt_pk_bf16_f32 v{of}, v{nm}, v{nm+1}")
            k(f"v_cvt_pk_bf16_f32 v{of+1}, v{nm+2}, v{nm+3}")
    assert ndma == 32
    k("global_load_dwordx4 v[12:15], v5, s[52:53]")
    k("v_add_u32 v16, 16384, v5")
    k("global_load_dwordx4 v[16:19], v16, s[52:53]")
    def acc(i, nt): return ACC + (i * 8 + nt) * 4
    FRG = 160
    for pp in range(4):
        k(f"s_waitcnt vmcnt({(3-pp)*8+2})")
        k.stamp()
        for nt in range(8):
            for t1 in range(2):
                k(f"ds_read_b64_tr_b16 {vr(FRG+nt*4+t1*2,2)}, v{TRA+nt} offset:{pp*8192+t1*4096}")
                if nt == 7 and t1 == 0:
                    k("s_waitcnt lgkmcnt(13)")
        for nt in range(8):
            k(f"s_waitcnt lgkmcnt({min(15,2*(7-nt))})")
            for i in range(2):
                c = "0" if pp == 0 else vr(acc(i, nt), 4)
                k(f"v_mfma_f32_16x16x32_bf16 {vr(acc(i,nt),4)}, {vr(FRG+nt*4,4)}, {vr(PQ+(i*8+pp*2)*4,4)}, {c}")
    if a:
        lz = k.newlabel("z")
        k("s_cmp_ge_u32 s2, 17")
        k(f"s_cbranch_scc1 {lz}")
        k("s_cmp_lg_u32 s3, 0")
        k(f"s_cbranch_scc1 {lz}")
        k.begin_cond()
        for j in range(4):
            k(f"v_mov_b32 v{20+j}, 0")
        k("s_lshl_b32 s10, s2, 12")
        k(f"s_add_u32 s10, s10, {L.KVB}")
        add64(k, 54, S_WS, "s10")
        for j in range(4):
            k(f"global_store_dwordx4 v5, v[20:23], s[54:55] offset:{j*1024}")
        k.end_cond()
        k.label(lz)
    k.stamp()
    k("s_barrier")
    k("s_lshl_b32 s10, s3, 12")
    k("v_add_u32 v20, s10, v5")
    for d in range(4):
        ld = k.newlabel("rd")
        k(f"s_cmp_eq_u32 s3, {d}")
        k(f"s_cbranch_scc1 {ld}")
        k.begin_cond()
        for i in range(2):
            for hf in range(2):
                k(f"ds_write_b128 v20, {vr(acc(i,2*d+hf),4)} offset:{d*16384+(i*2+hf)*1024}")
        k.end_cond()
        k.label(ld)
    FIN = 96
    lend_ = k.newlabel("own")
    for d in range(4):
        ld = k.newlabel("ow")
        k(f"s_cmp_lg_u32 s3, {d}")
        k(f"s_cbranch_scc1 {ld}")
        k.begin_cond()
        for i in range(2):
            for hf in range(2):
                for j in range(4):
                    k(f"v_mov_b32 v{FIN+(i*2+hf)*4+j}, v{acc(i,2*d+hf)+j}")
        k.end_cond()
        k.label(ld)
    k("s_waitcnt lgkmcnt(0)")
    k("s_barrier")
    k("s_lshl_b32 s10, s3, 14")
    k("v_add_u32 v20, s10, v5")
    RCV = 112
    for s_ in range(1, 4):
        k(f"s_add_u32 s10, s3, {s_}")
        k("s_and_b32 s10, s10, 3")
        k("s_lshl_b32 s10, s10, 12")
        k(f"v_add_u32 v{20+s_}, s10, v20")
        for q in range(4):
            k(f"ds_read_b128 {vr(RCV+((s_-1)*4+q)*4,4)}, v{20+s_} offset:{q*1024}")
    k("s_waitcnt lgkmcnt(0)")
    for s_ in range(3):
        for q in range(4):
            for j in range(0, 4, 2):
                k(f"v_pk_add_f32 {vr(FIN+q*4+j,2)}, {vr(FIN+q*4+j,2)}, {vr(RCV+(s_*4+q)*4+j,2)}")
    k("s_waitcnt vmcnt(0)")
    OUTR = 160
    for i in range(2):
        for q2 in range(4):
            f = FIN + i * 8 + q2 * 2
            xr = 12 + i * 4 + q2
            k(f"v_cvt_pk_bf16_f32 v24, v{f}, v{f+1}")
            k(f"v_lshlrev_b32 v{f}, 16, v24")
            k(f"v_and_b32 v{f+1}, 0xffff0000, v24")
            k(f"v_lshlrev_b32 v26, 16, v{xr}")
            k(f"v_and_b32 v27, 0xffff0000, v{xr}")
            k(f"v_pk_add_f32 {vr(f,2)}, {vr(f,2)}, v[26:27]")
            k(f"v_cvt_pk_bf16_f32 v{OUTR+i*4+q2}, v{f}, v{f+1}")
    k(f"s_add_u32 s10, s50, {XOUT}")
    add64(k, 54, S_WS, "s10")
    k("v_add_u32 v20, 16384, v5")
    k(f"global_store_dwordx4 v5, {vr(OUTR,4)}, s[54:55]")
    k(f"global_store_dwordx4 v20, {vr(OUTR+4,4)}, s[54:55]")
    k("s_lshl_b32 s10, s7, 2")
    k("s_add_u32 s10, s10, s3")
    k("s_lshr_b32 s11, s10, 3")
    k("s_lshl_b32 s11, s11, 10")
    k("s_lshr_b32 s12, s10, 1")
    k("s_and_b32 s12, s12, 3")
    k("s_lshl_b32 s12, s12, 8")
    k("s_add_u32 s11, s11, s12")
    k("s_and_b32 s12, s10, 1")
    k("s_lshl_b32 s12, s12, 3")
    k("s_add_u32 s11, s11, s12")
    k("s_lshl_b32 s12, s6, 12")
    k("s_add_u32 s11, s11, s12")
    k(f"s_add_u32 s11, s11, {STO}")
    add64(k, 56, S_WS, "s11")
    for i in range(2):
        stats_from_packed(k, OUTR + i * 4, 4, 24 + i * 2, 25 + i * 2, 10)
    for i in range(2):
        allreduce_g(k, 24 + i * 2, 28, "v_add_f32")
        allreduce_g(k, 25 + i * 2, 29, "v_add_f32")
    k("s_mov_b64 exec, 0xffff")
    k("global_store_dwordx2 v5, v[24:25], s[56:57]")
    k("global_store_dwordx2 v5, v[26:27], s[56:57] offset:2048")
    k("s_mov_b64 exec, -1")
    finish(k)
    return k, 131072 + 2048


def gen_k4(name, layer):
    a = layer == "a"
    HF = L.HFA if a else L.HFB
    XIN = L.X1F if a else L.X3F
    k = Kernel(name)
    prologue(k)
    k("s_and_b32 s8, s2, 7")
    k("s_lshr_b32 s9, s2, 3")
    k("s_lshl_b32 s6, s8, 2")
    k("s_and_b32 s10, s9, 3")
    k("s_add_u32 s6, s6, s10")
    k("s_lshr_b32 s7, s9, 2")
    k("v_and_b32 v3, 15, v1")
    k("v_lshrrev_b32 v4, 4, v1")
    k("v_lshlrev_b32 v5, 4, v1")
    k("v_lshrrev_b32 v6, 2, v3")
    k("v_and_b32 v7, 3, v3")
    k("v_lshl_add_u32 v8, v4, 2, v6")
    k("v_mov_b32 v10, 0x3f803f80")
    NS = 7
    HR, ACC, FRG, TRA = 32, 144, 208, 240
    def hreg(slot, i): return HR + slot * 16 + i * 4
    def acc(i, nt): return ACC + (i * 4 + nt) * 4
    for i in range(1, 4):
        k(f"v_add_u32 v{11+i}, {i*57344}, v5")
    k("v_lshrrev_b32 v15, 3, v1")
    k("v_and_b32 v16, 7, v1")
    k("v_lshrrev_b32 v17, 1, v16")
    k("v_lshrrev_b32 v18, 1, v15")
    k("v_and_b32 v18, 3, v18")
    k("v_xor_b32 v17, v17, v18")
    k("v_and_b32 v16, 1, v16")
    k("v_lshlrev_b32 v16, 4, v16")
    k("v_lshl_add_u32 v16, v17, 5, v16")
    k("v_lshl_add_u32 v15, v15, 10, v16")
    k("s_mul_i32 s48, s3, %d" % (NS * 4096))
    k("v_lshrrev_b32 v16, 1, v8")
    k("v_and_b32 v16, 3, v16")
    k("v_lshlrev_b32 v17, 7, v8")
    k("v_lshl_add_u32 v17, v7, 3, v17")
    k("v_add_u32 v17, s48, v17")
    for nt in range(4):
        k(f"v_xor_b32 v18, {nt}, v16")
        k(f"v_lshl_add_u32 v{TRA+nt}, v18, 5, v17")
    k("s_waitcnt lgkmcnt(0)")
    k.stamp()
    k("s_mul_i32 s10, s6, 224")
    k("s_mul_i32 s11, s3, 14")
    k("s_add_u32 s10, s10, s11")
    k("s_lshl_b32 s10, s10, 10")
    k(f"s_add_u32 s10, s10, {HF}")
    add64(k, 40, S_WS, "s10")
    k("s_mul_i32 s10, s3, %d" % (448 * 1024))
    k("s_lshl_b32 s11, s7, 7")
    k("s_add_u32 s10, s10, s11")
    add64(k, 42, S_W2, "s10")
    def rowbase(jp, ii):
        sb, j = divmod(jp, 7)
        if j < 3: r = j * 32 + ii * 8
        elif j < 6: r = 112 + (j - 3) * 32 + ii * 8
        else: r = 96 + ii * 8 + (96 if ii >= 2 else 0)
        return sb * 224 + r
    def issue(jp):
        slot = jp % NS
        for i in range(4):
            k(f"global_load_dwordx4 {vr(hreg(slot,i),4)}, v{[5,12,13,14][i]}, s[40:41]")
        add64(k, 40, 40, 1024)
        for ii in range(4):
            add64(k, 44, 42, rowbase(jp, ii) * 1024)
            k(f"s_add_u32 m0, s48, {slot*4096+ii*1024}")
            k("global_load_lds_dwordx4 v15, s[44:45]")
    for jp in range(NS):
        issue(jp)
    for jp in range(14):
        slot = jp % NS
        rem = min(NS - 1, 13 - jp)
        k(f"s_waitcnt vmcnt({rem*8})")
        if jp % 2 == 0 or jp == 13:
            k.stamp()
        fb = FRG + (jp & 1) * 16
        for nt in range(4):
            for t1 in range(2):
                k(f"ds_read_b64_tr_b16 {vr(fb+nt*4+t1*2,2)}, v{TRA+nt} offset:{slot*4096+t1*2048}")
        for nt in range(4):
            k(f"s_waitcnt lgkmcnt({2*(3-nt)})")
            for i in range(4):
                c = "0" if jp == 0 else vr(acc(i, nt), 4)
                k(f"v_mfma_f32_16x16x32_bf16 {vr(acc(i,nt),4)}, {vr(fb+nt*4,4)}, {vr(hreg(slot,i),4)}, {c}")
        if jp + NS < 14:
            issue(jp + NS)
    k("s_lshl_b32 s10, s6, 2")
    k("s_add_u32 s45, s10, s3")
    k("s_lshl_b32 s10, s45, 4")
    k("s_lshl_b32 s11, s7, 1")
    k("s_add_u32 s10, s10, s11")
    k("s_lshl_b32 s50, s10, 10")
    k(f"s_add_u32 s10, s50, {XIN}")
    add64(k, 52, S_WS, "s10")
    k("global_load_dwordx4 v[32:35], v5, s[52:53]")
    k("global_load_dwordx4 v[36:39], v5, s[52:53] offset:1024")
    k("s_lshl_b32 s10, s7, 7")
    add64(k, 54, S_B2, "s10")
    k("v_lshlrev_b32 v20, 3, v4")
    for nt in range(4):
        k(f"global_load_dwordx2 {vr(40+nt*2,2)}, v20, s[54:55] offset:{nt*32}")
    k.stamp()
    k("s_barrier")
    k("s_lshl_b32 s10, s3, 12")
    k("v_add_u32 v20, s10, v5")
    for d in range(4):
        ld = k.newlabel("rd")
        k(f"s_cmp_eq_u32 s3, {d}")
        k(f"s_cbranch_scc1 {ld}")
        k.begin_cond()
        for nt in range(4):
            k(f"ds_write_b128 v20, {vr(acc(d,nt),4)} offset:{d*16384+nt*1024}")
        k.end_cond()
        k.label(ld)
    FIN = 64
    for d in range(4):
        ld = k.newlabel("ow")
        k(f"s_cmp_lg_u32 s3, {d}")
        k(f"s_cbranch_scc1 {ld}")
        k.begin_cond()
        for nt in range(4):
            for j in range(4):
                k(f"v_mov_b32 v{FIN+nt*4+j}, v{acc(d,nt)+j}")
        k.end_cond()
        k.label(ld)
    k("s_waitcnt lgkmcnt(0)")
    k("s_barrier")
    k("s_lshl_b32 s10, s3, 14")
    k("v_add_u32 v20, s10, v5")
    RCV = 80
    for s_ in range(1, 4):
        k(f"s_add_u32 s10, s3, {s_}")
        k("s_and_b32 s10, s10, 3")
        k("s_lshl_b32 s10, s10, 12")
        k(f"v_add_u32 v{20+s_}, s10, v20")
        for q in range(4):
            k(f"ds_read_b128 {vr(RCV+((s_-1)*4+q)*4,4)}, v{20+s_} offset:{q*1024}")
    k("s_waitcnt lgkmcnt(0)")
    for s_ in range(3):
        for q in range(4):
            for j in range(0, 4, 2):
                k(f"v_pk_add_f32 {vr(FIN+q*4+j,2)}, {vr(FIN+q*4+j,2)}, {vr(RCV+(s_*4+q)*4+j,2)}")
    k("s_waitcnt vmcnt(0)")
    OUTR = 48
    for q2 in range(8):
        f = FIN + q2 * 2
        k(f"v_cvt_pk_bf16_f32 v24, v{f}, v{f+1}")
        k(f"v_lshlrev_b32 v{f}, 16, v24")
        k(f"v_and_b32 v{f+1}, 0xffff0000, v24")
        k(f"v_lshlrev_b32 v26, 16, v{40+q2}")
        k(f"v_and_b32 v27, 0xffff0000, v{40+q2}")
        k(f"v_pk_add_f32 {vr(f,2)}, {vr(f,2)}, v[26:27]")
        k(f"v_cvt_pk_bf16_f32 v24, v{f}, v{f+1}")
        k(f"v_lshlrev_b32 v{f}, 16, v24")
        k(f"v_and_b32 v{f+1}, 0xffff0000, v24")
        k(f"v_lshlrev_b32 v26, 16, v{32+q2}")
        k(f"v_and_b32 v27, 0xffff0000, v{32+q2}")
        k(f"v_pk_add_f32 {vr(f,2)}, {vr(f,2)}, v[26:27]")
        if PERTURB and not a:
            k(f"v_mul_f32 v{f}, {f32hex(1+PERTURB)}, v{f}")
            k(f"v_mul_f32 v{f+1}, {f32hex(1-PERTURB)}, v{f+1}")
        k(f"v_cvt_pk_bf16_f32 v{OUTR+q2}, v{f}, v{f+1}")
    if a:
        k(f"s_add_u32 s10, s50, {L.X2F}")
        add64(k, 54, S_WS, "s10")
        k(f"global_store_dwordx4 v5, {vr(OUTR,4)}, s[54:55]")
        k(f"global_store_dwordx4 v5, {vr(OUTR+4,4)}, s[54:55] offset:1024")
        k("s_lshr_b32 s12, s7, 1")
        k("s_lshl_b32 s11, s12, 8")
        k("s_and_b32 s12, s7, 1")
        k("s_lshl_b32 s12, s12, 3")
        k("s_add_u32 s11, s11, s12")
        k("s_lshl_b32 s12, s45, 11")
        k("s_add_u32 s11, s11, s12")
        k(f"s_add_u32 s11, s11, {L.ST2}")
        add64(k, 56, S_WS, "s11")
        stats_from_packed(k, OUTR, 8, 24, 25, 10)
        allreduce_g(k, 24, 28, "v_add_f32")
        allreduce_g(k, 25, 29, "v_add_f32")
        k("s_mov_b64 exec, 0xffff")
        k("global_store_dwordx2 v5, v[24:25], s[56:57]")
        k("s_mov_b64 exec, -1")
    else:
        k("s_lshl_b32 s10, s3, 12")
        k("s_add_u32 s10, s10, 65536")
        k("v_mul_u32_u24 v20, 144, v3")
        k("v_lshl_add_u32 v20, v4, 3, v20")
        k("v_add_u32 v20, s10, v20")
        for nt in range(4):
            k(f"ds_write_b64 v20, {vr(OUTR+nt*2,2)} offset:{nt*32}")
        k("v_lshrrev_b32 v21, 2, v1")
        k("v_and_b32 v22, 3, v1")
        k("v_mul_u32_u24 v23, 144, v21")
        k("v_lshl_add_u32 v23, v22, 4, v23")
        k("v_add_u32 v23, s10, v23")
        k("s_waitcnt lgkmcnt(0)")
        k("ds_read_b128 v[24:27], v23")
        k("ds_read_b128 v[28:31], v23 offset:64")
        k("v_lshlrev_b32 v21, 10, v21")
        k("v_lshl_add_u32 v21, v22, 4, v21")
        k("s_lshl_b32 s10, s45, 14")
        k("s_lshl_b32 s11, s7, 7")
        k("s_add_u32 s10, s10, s11")
        add64(k, 54, S_OUT, "s10")
        k("s_waitcnt lgkmcnt(0)")
        k("global_store_dwordx4 v21, v[24:27], s[54:55]")
        k("global_store_dwordx4 v21, v[28:31], s[54:55] offset:64")
    finish(k)
    return k, NS * 4096 * 4
```

```python
from k_common import *

ACT, ACC, CS, FRAG, ONES = 32, 96, 152, 160, 188
XCH, CSR, STR = 32768, 90112, 106496

def act(i, s): return ACT + (i * 8 + s) * 4

def gen_g8(name, kind, layer):
    k1 = kind == "k1"
    first = (k1 and layer == "a")
    NT = 6 if k1 else 7
    KSB = NT * 1024
    NDMA = NT
    def acc(i, nt): return ACC + (i * 7 + nt) * 4
    k = Kernel(name)
    prologue(k)
    k("s_and_b32 s4, s3, 3")
    k("s_lshr_b32 s5, s3, 2")
    k("s_and_b32 s8, s2, 7")
    k("s_lshr_b32 s9, s2, 3")
    k("s_lshr_b32 s6, s8, 1")
    k("s_lshl_b32 s6, s6, 2")
    k("s_and_b32 s10, s9, 3")
    k("s_add_u32 s6, s6, s10")
    k("s_and_b32 s7, s8, 1")
    k("s_lshl_b32 s7, s7, 3")
    k("s_lshr_b32 s10, s9, 2")
    k("s_add_u32 s7, s7, s10")
    k("v_and_b32 v3, 15, v1")
    k("v_lshrrev_b32 v4, 4, v1")
    k("v_lshlrev_b32 v5, 4, v1")
    k("v_lshrrev_b32 v6, 2, v3")
    k("v_and_b32 v7, 3, v3")
    k("v_lshl_add_u32 v8, v4, 2, v6")
    for j in range(4):
        k(f"v_mov_b32 v{ONES+j}, 0x3f803f80")
    if k1:
        k("v_lshlrev_b32 v9, 6, v8")
        k("v_lshl_add_u32 v9, v7, 3, v9")
        k("v_and_b32 v10, 1, v4")
        k("v_lshlrev_b32 v10, 5, v10")
        k(f"s_mul_i32 s10, s5, {8*KSB}")
        k("v_add_u32 v9, s10, v9")
        k("v_add_u32 v11, v9, v10")
        k("v_xor_b32 v10, 32, v10")
        k("v_add_u32 v12, v9, v10")
    else:
        k("v_mul_u32_u24 v9, 224, v8")
        k("v_lshl_add_u32 v9, v7, 3, v9")
        k(f"s_mul_i32 s10, s5, {8*KSB}")
        k("v_add_u32 v11, s10, v9")
    if k1:
        k("v_lshrrev_b32 v14, 2, v1")
        k("v_and_b32 v15, 3, v1")
        k("v_and_b32 v16, 1, v4")
        k("v_lshlrev_b32 v16, 1, v16")
        k("v_xor_b32 v15, v15, v16")
        k("s_and_b32 s10, s3, 1")
        if first:
            k("v_and_b32 v14, 3, v14")
            k("v_lshl_add_u32 v14, v4, 3, v14")
            k("s_lshl_b32 s10, s10, 2")
        else:
            k("s_lshl_b32 s10, s10, 4")
        k("v_add_u32 v14, s10, v14")
        k("v_mul_u32_u24 v13, 3072, v14")
        k("v_lshl_add_u32 v13, v15, 4, v13")
        k("s_lshr_b32 s10, s3, 1")
        k("s_lshl_b32 s10, s10, 10")
        k("s_lshl_b32 s11, s7, 6")
        k("s_add_u32 s10, s10, s11")
        STEPB = 32 * 3072
        WPTR = S_WQKV
    else:
        k("s_lshl_b32 s10, s3, 6")
        k("v_add_u32 v14, s10, v1")
        k("v_mul_u32_u24 v15, 4682, v14")
        k("v_lshrrev_b32 v15, 16, v15")
        k("v_mul_u32_u24 v16, 14, v15")
        k("v_sub_u32 v16, v14, v16")
        k("v_mul_u32_u24 v13, 3584, v15")
        k("v_lshl_add_u32 v13, v16, 4, v13")
        k("s_mul_i32 s10, s7, 224")
        STEPB = 32 * 3584
        WPTR = S_W1
    k("s_waitcnt lgkmcnt(0)")
    k.stamp()
    add64(k, 40, WPTR, "s10")
    add64(k, 42, 40, 8 * STEPB)
    k("s_lshl_b32 s44, s3, 10")
    k("s_lshl_b32 s10, s6, 3")
    k("s_lshl_b32 s11, s4, 1")
    k("s_add_u32 s45, s10, s11")
    if first:
        k("s_lshl_b32 s10, s45, 14")
        k("s_lshl_b32 s11, s5, 9")
        k("s_add_u32 s10, s10, s11")
        add64(k, 46, S_X, "s10")
        k("v_lshrrev_b32 v14, 2, v1")
        k("v_lshrrev_b32 v15, 5, v1")
        k("v_mul_u32_u24 v15, 3, v15")
        k("v_and_b32 v16, 3, v1")
        k("v_xor_b32 v16, v16, v15")
        k("v_lshlrev_b32 v17, 10, v14")
        k("v_lshl_add_u32 v17, v16, 4, v17")
        k("v_add_u32 v18, 16384, v17")
        k("s_mul_i32 s48, s3, 6144")
        k("s_add_u32 s48, s48, 98304")
        k("v_lshrrev_b32 v15, 3, v3")
        k("v_mul_u32_u24 v15, 3, v15")
        k("v_xor_b32 v15, v15, v4")
        k("v_lshlrev_b32 v19, 6, v3")
        k("v_lshl_add_u32 v19, v15, 4, v19")
        k("v_add_u32 v19, s48, v19")
        for j in range(4):
            k(f"v_mov_b32 v{20+j}, 0")
    else:
        XOFF = {("k1", "b"): L.X2F, ("k3", "a"): L.X1F, ("k3", "b"): L.X3F}[(kind, layer)]
        k("s_lshl_b32 s10, s45, 14")
        k("s_lshl_b32 s11, s5, 13")
        k("s_add_u32 s10, s10, s11")
        k(f"s_add_u32 s10, s10, {XOFF}")
        add64(k, 46, S_WS, "s10")
        k("v_add_u32 v17, 4096, v5")
        k("v_add_u32 v18, 16384, v5")
        k("v_add_u32 v19, 20480, v5")
        STOFF = {("k1", "b"): L.ST2, ("k3", "a"): L.ST1, ("k3", "b"): L.ST3}[(kind, layer)]
        k("s_add_u32 s10, s45, s5")
        k("s_lshl_b32 s10, s10, 11")
        k(f"s_add_u32 s10, s10, {STOFF}")
        add64(k, 50, S_WS, "s10")
        k("global_load_dwordx4 v[192:195], v5, s[50:51]")
        if not k1:
            k("global_load_dwordx4 v[196:199], v5, s[50:51] offset:1024")
    AUX = 147456 if k1 else 114688
    lab = k.newlabel("aux")
    k("s_cmp_lg_u32 s3, 7")
    k(f"s_cbranch_scc1 {lab}")
    k.begin_cond()
    k(f"s_mov_b32 m0, {AUX}")
    if k1:
        k("s_lshl_b32 s10, s7, 10")
        add64(k, 52, S_WPHI, "s10")
        k("global_load_lds_dwordx4 v5, s[52:53]")
        if first:
            lab2 = k.newlabel("nz")
            k("s_cmp_lg_u32 s6, 0")
            k(f"s_cbranch_scc1 {lab2}")
            k("v_mov_b32 v200, 0")
            k("v_mov_b32 v201, 0")
            k("v_mov_b32 v202, 0")
            k("v_mov_b32 v203, 0")
            k("s_lshl_b32 s10, s7, 12")
            k(f"s_add_u32 s10, s10, {L.KVA}")
            add64(k, 54, S_WS, "s10")
            for j in range(4):
                k(f"global_store_dwordx4 v5, v[200:203], s[54:55] offset:{j*1024} sc1")
            k("s_lshl_b32 s10, s7, 8")
            k(f"s_add_u32 s10, s10, {L.ZA}")
            add64(k, 54, S_WS, "s10")
            k("v_lshlrev_b32 v204, 2, v1")
            k("global_store_dword v204, v200, s[54:55] sc1")
            k("s_waitcnt vmcnt(0)")
            k("s_lshl_b32 s10, s7, 2")
            k("v_mov_b32 v204, s10")
            k("v_mov_b32 v205, 1")
            k("global_store_dword v204, v205, s[36:37] sc1")
            k.label(lab2)
    else:
        k("s_mul_i32 s10, s7, 224")
        add64(k, 52, S_B1, "s10")
        k("s_mov_b64 exec, 0x3fff")
        k("global_load_lds_dwordx4 v5, s[52:53]")
        k("s_mov_b64 exec, -1")
    k("s_waitcnt vmcnt(0)")
    k.end_cond()
    k.label(lab)

    def issue_w(s):
        labw = k.newlabel("w")
        k(f"s_cmp_ge_u32 s3, {NDMA}")
        k(f"s_cbranch_scc1 {labw}")
        k.begin_cond()
        k(f"s_add_u32 m0, s44, {s*KSB}")
        k("global_load_lds_dwordx4 v13, s[40:41]")
        k(f"s_add_u32 m0, s44, {(8+s)*KSB}")
        k("global_load_lds_dwordx4 v13, s[42:43]")
        add64(k, 40, 40, STEPB)
        add64(k, 42, 42, STEPB)
        k.end_cond()
        k.label(labw)

    def issue_act(s):
        if first:
            slot = s % 3
            k(f"s_add_u32 m0, s48, {slot*2048}")
            k(f"global_load_lds_dwordx4 v17, s[46:47]")
            k(f"s_add_u32 m0, s48, {slot*2048+1024}")
            k(f"global_load_lds_dwordx4 v18, s[46:47]")
            add64(k, 46, 46, 64)
        else:
            for i in range(2):
                vo = [5, 17, 18, 19][i * 2 + (s >> 2)]
                k(f"global_load_dwordx4 {vr(act(i,s),4)}, v{vo}, s[46:47] offset:{(s&3)*1024}")

    PD = 3 if first else 8
    for s in range(PD):
        issue_act(s)
        issue_w(s)

    k.stamp()
    for s in range(8):
        rem = min(PD - 1, 7 - s)
        la, lb = k.newlabel("wa"), k.newlabel("wb")
        k(f"s_cmp_ge_u32 s3, {NDMA}")
        k(f"s_cbranch_scc1 {la}")
        k(f"s_waitcnt vmcnt({rem*4})")
        k(f"s_branch {lb}")
        k.label(la)
        k(f"s_waitcnt vmcnt({rem*2})")
        k.label(lb)
        k("s_barrier")
        k.stamp()
        nl = 0
        if first:
            slot = s % 3
            for i in range(2):
                k(f"ds_read_b128 {vr(act(i,s),4)}, v19 offset:{slot*2048+i*1024}")
        for nt in range(NT):
            for t1 in range(2):
                if k1:
                    k(f"ds_read_b64_tr_b16 {vr(FRAG+nt*4+t1*2,2)}, v{11+(nt&1)} offset:{s*KSB+(nt>>1)*2048+t1*1024}")
                else:
                    k(f"ds_read_b64_tr_b16 {vr(FRAG+nt*4+t1*2,2)}, v11 offset:{s*KSB+t1*3584+nt*32}")
        if first:
            k(f"s_waitcnt lgkmcnt({2*NT})")
            if s + PD < 8:
                issue_act(s + PD)
                issue_w(s + PD)
            for i in range(2):
                for j in range(4):
                    k(f"v_dot2_f32_bf16 v{20+i}, v{act(i,s)+j}, v{ONES}, v{20+i}")
                    k(f"v_dot2_f32_bf16 v{22+i}, v{act(i,s)+j}, v{act(i,s)+j}, v{22+i}")
        for nt in range(NT):
            k(f"s_waitcnt lgkmcnt({2*(NT-1-nt)})")
            for i in range(2):
                c = "0" if s == 0 else vr(acc(i, nt), 4)
                k(f"v_mfma_f32_16x16x32_bf16 {vr(acc(i,nt),4)}, {vr(FRAG+nt*4,4)}, {vr(act(i,s),4)}, {c}")
            lc = k.newlabel("cs")
            k(f"s_cmp_lg_u32 s4, {nt&3}")
            k(f"s_cbranch_scc1 {lc}")
            k.begin_cond()
            cr = CS + (nt >> 2) * 4
            c = "0" if s == 0 else vr(cr, 4)
            k(f"v_mfma_f32_16x16x32_bf16 {vr(cr,4)}, {vr(FRAG+nt*4,4)}, {vr(ONES,4)}, {c}")
            k.end_cond()
            k.label(lc)

    if first:
        lx = k.newlabel("xf")
        k("s_lshr_b32 s10, s7, 2")
        k("s_cmp_lg_u32 s10, s4")
        k(f"s_cbranch_scc1 {lx}")
        k("s_and_b32 s10, s7, 1")
        k("s_cmp_lg_u32 s10, s5")
        k(f"s_cbranch_scc1 {lx}")
        k.begin_cond()
        k("v_lshlrev_b32 v24, 1, v4")
        k("v_and_b32 v24, 3, v24")
        k("v_lshl_add_u32 v24, v24, 4, v3")
        k("v_lshlrev_b32 v24, 4, v24")
        k("v_lshrrev_b32 v25, 1, v4")
        k("v_lshl_add_u32 v24, v25, 3, v24")
        k("v_add_u32 v25, 4096, v24")
        k("s_lshr_b32 s10, s7, 1")
        k("s_and_b32 s10, s10, 1")
        k("s_add_u32 s11, s45, s10")
        k("s_lshl_b32 s11, s11, 14")
        k("s_lshl_b32 s12, s5, 13")
        k("s_add_u32 s11, s11, s12")
        k(f"s_add_u32 s11, s11, {L.XF0}")
        add64(k, 54, S_WS, "s11")
        l1, l2 = k.newlabel("xi"), k.newlabel("xe")
        k("s_cmp_eq_u32 s10, 1")
        k(f"s_cbranch_scc1 {l1}")
        for i in range(2):
            if i == 1:
                k.label(l1)
            for s in range(8):
                vo = 24 + (s >> 2)
                k(f"global_store_dwordx2 v{vo}, {vr(act(i,s),2)}, s[54:55] offset:{(s&3)*1024}")
                k(f"global_store_dwordx2 v{vo}, {vr(act(i,s)+2,2)}, s[54:55] offset:{(s&3)*1024+256}")
            if i == 0:
                k(f"s_branch {l2}")
        k.label(l2)
        k.end_cond()
        k.label(lx)

    k.stamp()
    k("s_barrier")
    k(f"s_mul_i32 s10, s3, {NT*1024}")
    k(f"s_add_u32 s10, s10, {XCH}")
    k("v_add_u32 v24, s10, v5")
    k("s_xor_b32 s11, s3, 4")
    k(f"s_mul_i32 s10, s11, {NT*1024}")
    k(f"s_add_u32 s10, s10, {XCH}")
    k("v_add_u32 v25, s10, v5")
    k("s_lshl_b32 s10, s5, 13")
    k("s_lshl_b32 s11, s4, 10")
    k("s_add_u32 s10, s10, s11")
    k(f"s_add_u32 s10, s10, {CSR}")
    k("v_add_u32 v26, s10, v5")
    k(f"ds_write_b128 v26, {vr(CS,4)}")
    k(f"ds_write_b128 v26, {vr(CS+4,4)} offset:4096")
    if first:
        for j in range(4):
            allreduce_g(k, 20 + j, 27, "v_add_f32")
    l1, l2 = k.newlabel("xh"), k.newlabel("xh")
    k("s_cmp_eq_u32 s5, 1")
    k(f"s_cbranch_scc1 {l1}")
    for kh in range(2):
        if kh == 1:
            k.label(l1)
        k.begin_cond()
        for nt in range(NT):
            k(f"ds_write_b128 v24, {vr(acc(1-kh,nt),4)} offset:{nt*1024}")
        if first:
            k(f"v_mov_b32 v28, v{20+(1-kh)}")
            k(f"v_mov_b32 v29, v{22+(1-kh)}")
            k(f"v_mov_b32 v30, v{20+kh}")
            k(f"v_mov_b32 v31, v{22+kh}")
        if kh == 1:
            for nt in range(NT):
                for j in range(4):
                    k(f"v_mov_b32 v{acc(0,nt)+j}, v{acc(1,nt)+j}")
        k.end_cond()
        if kh == 0:
            k(f"s_branch {l2}")
    k.label(l2)
    if first:
        k("s_lshl_b32 s10, s3, 9")
        k(f"s_add_u32 s10, s10, {STR}")
        k("v_lshl_add_u32 v26, v1, 3, s10")
        k("ds_write_b64 v26, v[28:29]")
        k("s_xor_b32 s11, s3, 4")
        k("s_lshl_b32 s10, s11, 9")
        k(f"s_add_u32 s10, s10, {STR}")
        k("v_lshl_add_u32 v26, v1, 3, s10")
    k("s_waitcnt lgkmcnt(0)")
    k("s_barrier")
    k.stamp()
    R = acc(1, 0)
    for nt in range(NT):
        k(f"ds_read_b128 {vr(R+nt*4,4)}, v25 offset:{nt*1024}")
    k(f"v_add_u32 v27, {CSR}, v5")
    for nt in range(NT):
        k(f"ds_read_b128 {vr(ACT+nt*4,4)}, v27 offset:{nt*1024}")
    if first:
        k("ds_read_b64 v[28:29], v26")
    k(f"s_waitcnt lgkmcnt({NT+(1 if first else 0)})")
    for nt in range(NT):
        for j in range(0, 4, 2):
            k(f"v_pk_add_f32 {vr(acc(0,nt)+j,2)}, {vr(acc(0,nt)+j,2)}, {vr(R+nt*4+j,2)}")
    for nt in range(NT):
        k(f"ds_read_b128 {vr(ACT+32+nt*4,4)}, v27 offset:{8192+nt*1024}")
    if first:
        k(f"s_waitcnt lgkmcnt({NT})")
        k("v_add_f32 v20, v30, v28")
        k("v_add_f32 v21, v31, v29")
    else:
        k("v_add_f32 v20, v192, v194")
        k("v_add_f32 v21, v193, v195")
        if not k1:
            k("v_add_f32 v22, v196, v198")
            k("v_add_f32 v23, v197, v199")
            k("v_add_f32 v20, v20, v22")
            k("v_add_f32 v21, v21, v23")
        allreduce_g(k, 20, 27, "v_add_f32")
        allreduce_g(k, 21, 28, "v_add_f32")
    ln_scalars(k, 20, 21, 22, 23, 24, 25, 26, 27, double=not k1)
    k("s_waitcnt lgkmcnt(0)")
    for nt in range(NT):
        for j in range(0, 4, 2):
            k(f"v_pk_add_f32 {vr(ACT+nt*4+j,2)}, {vr(ACT+nt*4+j,2)}, {vr(ACT+32+nt*4+j,2)}")
    for nt in range(NT):
        for j in range(0, 4, 2):
            a_ = acc(0, nt) + j
            k(f"v_pk_mul_f32 {vr(a_,2)}, {vr(a_,2)}, v[22:23] op_sel_hi:[1,0]")
            k(f"v_pk_fma_f32 {vr(a_,2)}, {vr(ACT+nt*4+j,2)}, v[22:23], {vr(a_,2)} op_sel:[0,1,0] op_sel_hi:[1,1,1] neg_lo:[1,0,0] neg_hi:[1,0,0]")
    k("s_add_u32 s45, s45, s5")
    if k1:
        epi_k1(k, layer, first, acc)
    else:
        epi_k3(k, layer, acc, AUX)
    finish(k)
    return k, (145 * 1024 if k1 else 113 * 1024)


def epi_k3(k, layer, acc, AUX):
    HOFF = L.HFA if layer == "a" else L.HFB
    k(f"v_lshl_add_u32 v24, v4, 3, 0")
    k(f"v_add_u32 v24, {AUX}, v24")
    BI = ACT
    for nt in range(7):
        k(f"ds_read_b64 {vr(BI+nt*2,2)}, v24 offset:{nt*32}")
    k("s_lshr_b32 s10, s7, 1")
    k("s_mul_i32 s10, s10, 7")
    k("s_and_b32 s11, s7, 1")
    k("s_mul_i32 s12, s11, 3")
    k("s_add_u32 s12, s12, s10")
    k("s_mul_i32 s13, s45, 56")
    k("s_add_u32 s12, s12, s13")
    k("s_lshl_b32 s12, s12, 10")
    k(f"s_add_u32 s12, s12, {HOFF}")
    add64(k, 54, S_WS, "s12")
    k("s_add_u32 s10, s10, s13")
    k("s_add_u32 s10, s10, 6")
    k("s_lshl_b32 s10, s10, 10")
    k("s_lshl_b32 s11, s11, 3")
    k("s_add_u32 s10, s10, s11")
    k(f"s_add_u32 s10, s10, {HOFF}")
    add64(k, 56, S_WS, "s10")
    K0 = 2 * 0.7978845608028654 * LOG2E
    K1 = K0 * 0.044715
    k(f"v_mov_b32 v26, {f32hex(-K1)}")
    k(f"v_mov_b32 v27, {f32hex(-K0)}")
    k("v_mov_b32 v28, 1.0")
    k("s_waitcnt lgkmcnt(0)")
    OUT = ACT + 32
    T = 200
    for nt in range(7):
        for j in range(0, 4, 2):
            a_ = acc(0, nt) + j
            t = T + ((nt * 2 + j // 2) % 4) * 8
            k(f"v_cvt_pk_bf16_f32 v{t}, v{a_}, v{a_+1}")
            k(f"v_lshlrev_b32 v{t+2}, 16, v{BI+nt*2+j//2}")
            k(f"v_and_b32 v{t+3}, 0xffff0000, v{BI+nt*2+j//2}")
            k(f"v_lshlrev_b32 v{a_}, 16, v{t}")
            k(f"v_and_b32 v{a_+1}, 0xffff0000, v{t}")
            k(f"v_pk_add_f32 {vr(a_,2)}, {vr(a_,2)}, {vr(t+2,2)}")
            k(f"v_cvt_pk_bf16_f32 v{t}, v{a_}, v{a_+1}")
            k(f"v_lshlrev_b32 v{a_}, 16, v{t}")
            k(f"v_and_b32 v{a_+1}, 0xffff0000, v{t}")
            k(f"v_pk_mul_f32 {vr(t+2,2)}, {vr(a_,2)}, {vr(a_,2)}")
            k(f"v_pk_fma_f32 {vr(t+2,2)}, {vr(t+2,2)}, v[26:27], v[26:27] op_sel:[0,0,1] op_sel_hi:[1,0,1]")
            k(f"v_pk_mul_f32 {vr(t+2,2)}, {vr(t+2,2)}, {vr(a_,2)}")
            k(f"v_exp_f32 v{t+2}, v{t+2}")
            k(f"v_exp_f32 v{t+3}, v{t+3}")
            k(f"v_pk_add_f32 {vr(t+2,2)}, {vr(t+2,2)}, v[28:29] op_sel_hi:[1,0]")
            k(f"v_rcp_f32 v{t+2}, v{t+2}")
            k(f"v_rcp_f32 v{t+3}, v{t+3}")
            k(f"v_pk_mul_f32 {vr(t+2,2)}, {vr(t+2,2)}, {vr(a_,2)}")
            k(f"v_cvt_pk_bf16_f32 v{OUT+nt*2+j//2}, v{t+2}, v{t+3}")
        if nt in (1, 3, 5):
            k(f"global_store_dwordx4 v5, {vr(OUT+(nt-1)*2,4)}, s[54:55] offset:{(nt//2)*1024}")
    k(f"global_store_dwordx2 v5, {vr(OUT+12,2)}, s[56:57]")


def epi_k1(k, layer, first, acc):
    PHI = L.PHIQA if layer == "a" else L.PHIQB
    KV = L.KVA if layer == "a" else L.KVB
    ZZ = L.ZA if layer == "a" else L.ZB
    AUX = 147456
    if first:
        k("s_lshl_b32 s10, s7, 2")
        k("v_mov_b32 v250, s10")
        k("global_load_dword v251, v250, s[36:37] sc1")
    k("v_lshlrev_b32 v24, 5, v8")
    k("v_lshl_add_u32 v24, v7, 3, v24")
    k(f"v_add_u32 v24, {AUX}, v24")
    WP = ACT
    k(f"ds_read_b64_tr_b16 {vr(WP,2)}, v24")
    k(f"ds_read_b64_tr_b16 {vr(WP+2,2)}, v24 offset:512")
    P = ACT + 8
    for nt in range(6):
        for j in range(2):
            k(f"v_cvt_pk_bf16_f32 v{P+nt*2+j}, v{acc(0,nt)+2*j}, v{acc(0,nt)+2*j+1}")
    k("s_waitcnt lgkmcnt(0)")
    PQ = ACT + 24
    for nt in range(4):
        k(f"v_mfma_f32_16x16x16_bf16 {vr(PQ+nt*4,4)}, {vr(WP+(nt&1)*2,2)}, {vr(P+nt*2,2)}, 0")
    k("s_lshl_b32 s10, s4, 5")
    k("s_lshl_b32 s11, s5, 4")
    k("s_add_u32 s10, s10, s11")
    k("v_add_u32 v24, s10, v3")
    k("v_lshlrev_b32 v24, 5, v24")
    k("v_lshl_add_u32 v24, v4, 3, v24")
    for hh in range(2):
        k(f"ds_write_b64 v24, {vr(P+(4+hh)*2,2)} offset:{hh*12288+8192}")
    k("s_lshl_b32 s10, s45, 5")
    k("s_lshl_b32 s11, s7, 1")
    k("s_add_u32 s10, s10, s11")
    k("s_lshl_b32 s10, s10, 10")
    k(f"s_add_u32 s10, s10, {PHI}")
    add64(k, 54, S_WS, "s10")
    k(f"v_mov_b32 v25, {f32hex(LOG2E)}")
    PH = ACT + 40
    for nt in range(4):
        x = PQ + nt * 4
        t = 200 + nt * 12
        k(f"v_cvt_pk_bf16_f32 v{t}, v{x}, v{x+1}")
        k(f"v_cvt_pk_bf16_f32 v{t+1}, v{x+2}, v{x+3}")
        k(f"v_lshlrev_b32 v{x}, 16, v{t}")
        k(f"v_and_b32 v{x+1}, 0xffff0000, v{t}")
        k(f"v_lshlrev_b32 v{x+2}, 16, v{t+1}")
        k(f"v_and_b32 v{x+3}, 0xffff0000, v{t+1}")
        k(f"v_max3_f32 v{t}, v{x}, v{x+1}, v{x+2}")
        k(f"v_max_f32 v{t}, v{t}, v{x+3}")
        k(f"v_min3_f32 v{t+1}, v{x}, v{x+1}, v{x+2}")
        k(f"v_min_f32 v{t+1}, v{t+1}, v{x+3}")
    for nt in range(4):
        t = 200 + nt * 12
        allreduce_g(k, t, t + 2, "v_max_f32")
        allreduce_g(k, t + 1, t + 3, "v_min_f32")
    for nt in range(4):
        x = PQ + nt * 4
        t = 200 + nt * 12
        k(f"v_mul_f32 v{t}, v{t}, v25")
        k(f"v_mul_f32 v{t+1}, v{t+1}, v25")
        for j in range(4):
            k(f"v_fma_f32 v{t+4+j}, v{x+j}, v25, -v{t}")
            k(f"v_fma_f32 v{t+8+j}, -v{x+j}, v25, v{t+1}")
        for j in range(8):
            k(f"v_exp_f32 v{t+4+j}, v{t+4+j}")
        k(f"v_add_f32 v{t}, v{t+4}, v{t+5}")
        k(f"v_add_f32 v{t+1}, v{t+8}, v{t+9}")
        k(f"v_add_f32 v{t+2}, v{t+6}, v{t+7}")
        k(f"v_add_f32 v{t+3}, v{t+10}, v{t+11}")
        k(f"v_add_f32 v{t}, v{t}, v{t+2}")
        k(f"v_add_f32 v{t+1}, v{t+1}, v{t+3}")
    for nt in range(4):
        t = 200 + nt * 12
        allreduce_g(k, t, t + 2, "v_add_f32")
        allreduce_g(k, t + 1, t + 3, "v_add_f32")
    for nt in range(4):
        t = 200 + nt * 12
        k(f"v_rcp_f32 v{t}, v{t}")
        k(f"v_rcp_f32 v{t+1}, v{t+1}")
        for j in range(0, 4, 2):
            k(f"v_pk_mul_f32 {vr(t+4+j,2)}, {vr(t+4+j,2)}, {vr(t,2)} op_sel_hi:[1,0]")
            k(f"v_pk_mul_f32 {vr(t+8+j,2)}, {vr(t+8+j,2)}, {vr(t,2)} op_sel:[0,1] op_sel_hi:[1,1]")
        for j in range(4):
            k(f"v_cvt_pk_bf16_f32 v{PH+nt*4+j}, v{t+4+2*j}, v{t+5+2*j}")
        if nt < 2:
            k(f"global_store_dwordx4 v5, {vr(PH+nt*4,4)}, s[54:55] offset:{nt*1024}")
        else:
            hh = nt - 2
            k(f"ds_write_b64 v24, {vr(PH+nt*4,2)} offset:{hh*12288}")
            k(f"ds_write_b64 v24, {vr(PH+nt*4+2,2)} offset:{hh*12288+4096}")
    k("s_waitcnt lgkmcnt(0)")
    k("s_barrier")
    k.stamp()
    lend = f"L_fin_{k.name}"
    k("s_cmp_ge_u32 s3, 4")
    k(f"s_cbranch_scc1 {lend}")
    k("s_lshr_b32 s10, s3, 1")
    k("s_and_b32 s11, s3, 1")
    k("s_mul_i32 s12, s10, 12288")
    k("s_lshl_b32 s13, s11, 12")
    k("s_add_u32 s13, s13, s12")
    k("v_lshlrev_b32 v24, 5, v8")
    k("v_lshl_add_u32 v24, v7, 3, v24")
    k("v_add_u32 v25, s13, v24")
    k("v_add_u32 v26, s12, v24")
    A = ACT; B = ACT + 16
    for ks in range(4):
        for t1 in range(2):
            k(f"ds_read_b64_tr_b16 {vr(A+ks*4+t1*2,2)}, v25 offset:{ks*1024+t1*512}")
            k(f"ds_read_b64_tr_b16 {vr(B+ks*4+t1*2,2)}, v26 offset:{8192+ks*1024+t1*512}")
    D = ACT + 32; Z = ACT + 36
    for ks in range(4):
        k(f"s_waitcnt lgkmcnt({(3-ks)*4})")
        c = "0" if ks == 0 else vr(D, 4)
        k(f"v_mfma_f32_16x16x32_bf16 {vr(D,4)}, {vr(A+ks*4,4)}, {vr(B+ks*4,4)}, {c}")
        c = "0" if ks == 0 else vr(Z, 4)
        k(f"v_mfma_f32_16x16x32_bf16 {vr(Z,4)}, {vr(ONES,4)}, {vr(A+ks*4,4)}, {c}")
    k("s_lshl_b32 s12, s7, 1")
    k("s_add_u32 s12, s12, s10")
    k("s_lshl_b32 s13, s12, 1")
    k("s_add_u32 s13, s13, s11")
    k("s_lshl_b32 s14, s13, 10")
    k(f"s_add_u32 s14, s14, {KV}")
    add64(k, 54, S_WS, "s14")
    k("s_lshl_b32 s14, s13, 6")
    k(f"s_add_u32 s14, s14, {ZZ}")
    add64(k, 56, S_WS, "s14")
    k("v_lshlrev_b32 v24, 2, v1")
    if first:
        lp = k.newlabel("poll")
        lq = k.newlabel("pollok")
        k.label(lp)
        k("s_waitcnt vmcnt(0)")
        k("v_readfirstlane_b32 s14, v251")
        k("s_cmp_eq_u32 s14, 1")
        k(f"s_cbranch_scc1 {lq}")
        k("s_sleep 2")
        k("global_load_dword v251, v250, s[36:37] sc1")
        k(f"s_branch {lp}")
        k.label(lq)
    for r in range(4):
        k(f"global_atomic_add_f32 v24, v{D+r}, s[54:55] offset:{r*256}")
    k("s_mov_b64 exec, 0xffff")
    k(f"global_atomic_add_f32 v24, v{Z}, s[56:57]")
    k("s_mov_b64 exec, -1")
```

```python
from asmlib import Kernel, vr, sr
import layout as L

S_X, S_WQKV, S_WPHI, S_WO, S_W1, S_B1, S_W2 = 16, 18, 20, 22, 26, 28, 30
S_B2, S_OUT, S_DBG, S_WS = 32, 34, 36, 38
LOG2E = 1.4426950408889634

def f32hex(x):
    import struct
    return "0x%08x" % struct.unpack("<I", struct.pack("<f", x))[0]

def prologue(k, nwg=256):
    k(f"s_cmp_ge_u32 s2, {nwg}")
    k(f"s_cbranch_scc1 L_end_{k.name}")
    k("s_load_dwordx16 s[16:31], s[0:1], 0")
    k("s_load_dwordx8 s[32:39], s[0:1], 64")
    k("v_lshrrev_b32 v2, 6, v0")
    k("v_and_b32 v1, 63, v0")
    k("v_readfirstlane_b32 s3, v2")

def add64(k, d, a, imm_or_sreg):
    k(f"s_add_u32 s{d}, s{a}, {imm_or_sreg}")
    k(f"s_addc_u32 s{d+1}, s{a+1}, 0")

def rbf(k, d, s):
    k(f"v_cvt_pk_bf16_f32 v{d}, v{s}, v{s}")
    k(f"v_lshlrev_b32 v{d}, 16, v{d}")

def allreduce_g(k, v, tmp, op):
    k(f"v_mov_b32 v{tmp}, v{v}")
    k(f"v_permlane32_swap_b32 v{v}, v{tmp}")
    k(f"{op} v{v}, v{v}, v{tmp}")
    k(f"v_mov_b32 v{tmp}, v{v}")
    k(f"v_permlane16_swap_b32 v{v}, v{tmp}")
    k(f"{op} v{v}, v{v}, v{tmp}")

def ln_scalars(k, vS, vQ, va, vc, t0, t1, t2, t3, double):
    k(f"v_mul_f32 v{vS}, {f32hex(1/512)}, v{vS}")
    k(f"v_mul_f32 v{vQ}, {f32hex(1/512)}, v{vQ}")
    k(f"v_fma_f32 v{vQ}, -v{vS}, v{vS}, v{vQ}")
    k(f"v_max_f32 v{vQ}, 0, v{vQ}")
    rbf(k, t0, vS)
    rbf(k, t1, vQ)
    k(f"v_add_f32 v{t1}, {f32hex(1e-5)}, v{t1}")
    rbf(k, t1, t1)
    k(f"v_sqrt_f32 v{t1}, v{t1}")
    rbf(k, t1, t1)
    k(f"v_rcp_f32 v{va}, v{t1}")
    if not double:
        k(f"v_mul_f32 v{vc}, v{t0}, v{va}")
        return
    k(f"v_sub_f32 v{t2}, v{vS}, v{t0}")
    k(f"v_mul_f32 v{t2}, v{t2}, v{va}")
    rbf(k, t2, t2)
    k(f"v_mul_f32 v{t3}, v{vQ}, v{va}")
    k(f"v_mul_f32 v{t3}, v{t3}, v{va}")
    rbf(k, t3, t3)
    k(f"v_add_f32 v{t3}, {f32hex(1e-5)}, v{t3}")
    rbf(k, t3, t3)
    k(f"v_sqrt_f32 v{t3}, v{t3}")
    rbf(k, t3, t3)
    k(f"v_rcp_f32 v{t3}, v{t3}")
    k(f"v_fma_f32 v{vc}, v{t0}, v{va}, v{t2}")
    k(f"v_mul_f32 v{vc}, v{vc}, v{t3}")
    k(f"v_mul_f32 v{va}, v{va}, v{t3}")

def descriptor(name, nvgpr, nsgpr=102):
    acc = min(256, (nvgpr + 3) // 4 * 4)
    return f""".p2align 6
.amdhsa_kernel {name}
  .amdhsa_next_free_vgpr {nvgpr}
  .amdhsa_next_free_sgpr {nsgpr}
  .amdhsa_accum_offset {acc}
  .amdhsa_group_segment_fixed_size 0
  .amdhsa_kernarg_size 96
  .amdhsa_user_sgpr_count 2
  .amdhsa_user_sgpr_kernarg_segment_ptr 1
  .amdhsa_system_sgpr_workgroup_id_x 1
.end_amdhsa_kernel
"""

def wrap(k):
    return f""".globl {k.name}
.p2align 8
.type {k.name},@function
{k.name}:
{k.text()}
L_end_{k.name}:
    s_endpgm
"""

KIDX = {}
def finish(k):
    k.label(f"L_fin_{k.name}")
    k.stamp()
    idx = KIDX.setdefault(k.name, len(KIDX))
    k.dump_stamps(idx)
```

```python
import re

TRANS = ("v_exp_f32", "v_log_f32", "v_rcp_f32", "v_rsq_f32", "v_sqrt_f32", "v_sin_f32", "v_cos_f32")

_reg_re = re.compile(r"^(-|abs\()?\|?([vsa])(?:(\d+)|\[(\d+):(\d+)\])\|?\)?$")


def regs_of(tok):
    tok = tok.strip()
    if tok in ("vcc",):
        return ("s", {106, 107})
    if tok == "vcc_lo":
        return ("s", {106})
    if tok == "vcc_hi":
        return ("s", {107})
    if tok == "exec":
        return ("s", {126, 127})
    if tok == "m0":
        return ("s", {124})
    m = _reg_re.match(tok)
    if not m:
        return None
    k = m.group(2)
    if m.group(3) is not None:
        return (k, {int(m.group(3))})
    return (k, set(range(int(m.group(4)), int(m.group(5)) + 1)))


class Ins:
    __slots__ = ("text", "mn", "kind", "vw", "vr", "sw", "sr", "passes", "srcc", "srcab", "wide_store",
                 "weight", "region", "dst_first", "dpp")


class Kernel:
    def __init__(self, name):
        self.name = name
        self.out = []
        self.hist = []
        self.region = 0
        self._nreg = 0
        self._lab = 0

    def newlabel(self, p="L"):
        self._lab += 1
        return f"{p}_{self.name}_{self._lab}"

    def label(self, name):
        self.out.append(f"{name}:")

    def comment(self, s):
        self.out.append(f"    ; {s}")

    def begin_cond(self):
        self._nreg += 1
        self.region = self._nreg

    def end_cond(self):
        self.region = 0

    STAMPS = False
    def stamp(self):
        if not Kernel.STAMPS:
            return
        i = getattr(self, "_nstamp", 0)
        self._nstamp = i + 1
        assert i < 16
        if i == 0:
            self("s_memrealtime s[96:97]")
        self(f"s_memtime s[{64+2*i}:{65+2*i}]")
        self("s_waitcnt lgkmcnt(0)")

    def dump_stamps(self, kidx, ws_sreg=38):
        if not Kernel.STAMPS:
            return
        n = getattr(self, "_nstamp", 0)
        self("s_mov_b64 exec, -1")
        self("s_lshl_b32 s10, s2, 3")
        self("s_add_u32 s10, s10, s3")
        self("s_lshl_b32 s10, s10, 7")
        self(f"s_add_u32 s10, s10, {(40+kidx)*1048576}")
        self(f"s_add_u32 s10, s{ws_sreg}, s10")
        self(f"s_addc_u32 s11, s{ws_sreg+1}, 0")
        self("v_mov_b32 v2, 0")
        self("s_memrealtime s[98:99]")
        self("s_waitcnt lgkmcnt(0)")
        self("v_mov_b32 v3, s96")
        self("global_store_dword v2, v3, s[10:11] offset:120")
        self("v_mov_b32 v3, s98")
        self("global_store_dword v2, v3, s[10:11] offset:124")
        for i in range(n):
            self(f"v_mov_b32 v3, s{64+2*i}")
            self(f"global_store_dword v2, v3, s[10:11] offset:{i*4}")

    def fence(self):
        self("s_nop 15")
        self("s_nop 3")

    def _parse(self, text):
        I = Ins()
        I.text = text
        body = text.split(";")[0].strip()
        parts = body.split(None, 1)
        mn = parts[0]
        I.mn = mn
        ops = []
        if len(parts) > 1:
            cur = ""
            depth = 0
            for ch in parts[1]:
                if ch in "[(":
                    depth += 1
                if ch in "])":
                    depth -= 1
                if ch == "," and depth == 0:
                    ops.append(cur.strip())
                    cur = ""
                else:
                    cur += ch
            ops.append(cur.strip())
        mods = []
        if ops:
            last = ops[-1].split()
            ops[-1] = last[0] if last else ""
            mods = last[1:]
        I.dpp = any(m.startswith(("row_", "quad_perm", "wave_")) for m in mods)
        vw, vr, sw, sr = set(), set(), set(), set()

        def add(tok, wr):
            r = regs_of(tok)
            if r is None:
                return
            k, s = r
            if k == "a":
                s = {x + 1000 for x in s}
                k = "v"
            if k == "v":
                (vw if wr else vr).update(s)
            else:
                (sw if wr else sr).update(s)

        I.passes = 0
        I.srcc = set()
        I.srcab = set()
        I.wide_store = set()
        I.weight = 1
        if mn.startswith("v_mfma"):
            I.kind = "mfma"
            I.passes = 8 if "32x32" in mn else 4
            add(ops[0], True)
            for o in ops[1:4]:
                add(o, False)
            for o in ops[1:3]:
                r = regs_of(o)
                if r:
                    I.srcab |= {x + (1000 if r[0] == "a" else 0) for x in r[1]}
            r = regs_of(ops[3])
            if r and r[0] in "va":
                I.srcc = {x + (1000 if r[0] == "a" else 0) for x in r[1]}
        elif mn.startswith("v_permlane") and "swap" in mn:
            I.kind = "valu"
            for o in ops[:2]:
                add(o, True)
                add(o, False)
        elif mn.startswith("v_cmp"):
            I.kind = "valu"
            add(ops[0], True)
            for o in ops[1:]:
                add(o, False)
        elif mn.startswith("v_"):
            I.kind = "valu"
            add(ops[0], True)
            start = 1
            if mn.startswith(("v_add_co", "v_addc_co", "v_sub_co", "v_subb_co", "v_subrev_co")):
                add(ops[1], True)
                start = 2
            for o in ops[start:]:
                add(o, False)
            if mn.startswith(("v_fmac", "v_pk_fmac", "v_dot2c")):
                add(ops[0], False)
            if mn.startswith("v_cndmask") and len(ops) == 3:
                sr.update({106, 107})
        elif mn.startswith("ds_read") or mn.startswith("ds_bpermute") or mn.startswith("ds_permute") or mn.startswith("ds_swizzle"):
            I.kind = "ds"
            add(ops[0], True)
            for o in ops[1:]:
                add(o, False)
        elif mn.startswith("ds_"):
            I.kind = "ds"
            for o in ops:
                add(o, False)
        elif mn.startswith("global_load_lds"):
            I.kind = "dma"
            for o in ops:
                add(o, False)
        elif mn.startswith("global_load"):
            I.kind = "vmem"
            add(ops[0], True)
            for o in ops[1:]:
                add(o, False)
        elif mn.startswith("global_store"):
            I.kind = "vmem"
            for o in ops:
                add(o, False)
            if "x4" in mn or "x3" in mn:
                r = regs_of(ops[1])
                I.wide_store = set(r[1])
        elif mn.startswith("global_atomic"):
            I.kind = "vmem"
            if "sc0" in mods:
                add(ops[0], True)
                for o in ops[1:]:
                    add(o, False)
            else:
                for o in ops:
                    add(o, False)
        elif mn.startswith("buffer_"):
            raise NotImplementedError(mn)
        elif mn == "s_nop":
            I.kind = "nop"
            I.weight = int(ops[0], 0) + 1
        elif mn.startswith("s_"):
            I.kind = "salu"
            if mn.startswith(("s_cmp", "s_cbranch", "s_branch", "s_waitcnt", "s_barrier", "s_endpgm", "s_setprio", "s_sleep")):
                for o in ops:
                    add(o, False)
            else:
                if ops:
                    add(ops[0], True)
                for o in ops[1:]:
                    add(o, False)
        else:
            raise ValueError("unknown instr " + text)
        I.vw, I.vr, I.sw, I.sr = vw, vr, sw, sr
        I.region = self.region
        return I

    def _need(self, P, C):
        n = 0
        pk, ck = P.kind, C.kind
        if pk == "valu":
            raw = P.vw & C.vr
            if ck == "mfma" and raw:
                n = max(n, 2)
            if ck == "valu":
                if raw and P.mn.startswith(TRANS) and not C.mn.startswith(TRANS):
                    n = max(n, 1)
                if raw and (C.mn.startswith("v_permlane") or C.dpp):
                    n = max(n, 2)
                if raw and C.mn.startswith(("v_readfirstlane", "v_readlane")):
                    n = max(n, 1)
                if P.sw & C.sr:
                    n = max(n, 4 if C.mn.startswith(("v_readlane", "v_writelane")) else 2)
                if P.mn.startswith("v_dot2"):
                    if (P.vw & (C.vr | C.vw)):
                        same = C.mn == P.mn
                        if not same:
                            n = max(n, 3)
                        else:
                            ops = C.text.split(None, 1)[1].split(",")
                            ab = set()
                            for o in ops[1:3]:
                                r = regs_of(o.strip().split()[0])
                                if r and r[0] == "v":
                                    ab |= r[1]
                            if P.vw & ab:
                                n = max(n, 3)
            if ck in ("vmem", "dma") and (P.sw & C.sr):
                n = max(n, 5)
            if P.mn.startswith("v_dot2") and ck in ("vmem", "ds", "dma", "mfma") and raw:
                n = max(n, 3)
        if pk == "mfma":
            big = {4: 8, 8: 12}[P.passes]
            if ck == "mfma":
                if P.vw & C.srcab:
                    n = max(n, big)
                if P.vw & C.srcc:
                    if C.srcc == P.vw and C.passes == P.passes:
                        pass
                    else:
                        n = max(n, P.passes + 2)
                if (P.vw & C.vw) and not (C.srcc == P.vw):
                    n = max(n, big)
            elif ck == "valu":
                if P.vw & (C.vr | C.vw):
                    n = max(n, big)
                if P.srcc & C.vw:
                    n = max(n, P.passes - 1)
            elif ck in ("vmem", "ds", "dma"):
                if P.vw & (C.vr | C.vw):
                    n = max(n, big)
                if P.srcc & C.vw:
                    n = max(n, P.passes - 1)
        if pk == "salu" and 124 in P.sw and ck == "dma":
            n = max(n, 1)
        if pk == "vmem" and P.wide_store:
            if P.wide_store & C.vw:
                n = max(n, 2 if ck in ("valu", "mfma") else 1)
        return n

    def __call__(self, text):
        C = self._parse(text)
        dist = 0
        need_extra = 0
        for P in reversed(self.hist[-40:]):
            req = self._need(P, C)
            if req > dist:
                need_extra = max(need_extra, req - dist)
            if P.region == 0 or P.region == C.region:
                dist += P.weight
            if dist >= 24:
                break
        while need_extra > 0:
            k = min(need_extra, 16)
            N = self._parse(f"s_nop {k-1}")
            self.hist.append(N)
            self.out.append(f"    s_nop {k-1}")
            need_extra -= k
        self.hist.append(C)
        self.out.append("    " + text)

    def text(self):
        return "\n".join(self.out)


def vr(a, n=1):
    return f"v{a}" if n == 1 else f"v[{a}:{a+n-1}]"


def sr(a, n=1):
    return f"s{a}" if n == 1 else f"s[{a}:{a+n-1}]"
```

```python
from v2_common import *

ONES = 28
ACCA, ACCB, CSA = 32, 64, 88
FR = 96
TMP = 176
def areg(i, p): return (i * 16 + p) * 4

def map_wg(k):
    k("s_and_b32 s8, s2, 7")
    k("s_lshr_b32 s9, s2, 3")
    k("s_lshr_b32 s6, s8, 1")
    k("s_lshl_b32 s6, s6, 2")
    k("s_and_b32 s10, s9, 3")
    k("s_add_u32 s6, s6, s10")
    k("s_and_b32 s7, s8, 1")
    k("s_lshl_b32 s7, s7, 3")
    k("s_lshr_b32 s10, s9, 2")
    k("s_add_u32 s7, s7, s10")
    k("s_lshl_b32 s10, s6, 3")
    k("s_lshl_b32 s11, s3, 1")
    k("s_add_u32 s45, s10, s11")

def ln_list(vS, vQ, va, vc, t0, t1, t2, t3, double):
    L_ = []
    A = L_.append
    A(f"v_mul_f32 v{vS}, {f32hex(1/512)}, v{vS}")
    A(f"v_mul_f32 v{vQ}, {f32hex(1/512)}, v{vQ}")
    A(f"v_fma_f32 v{vQ}, -v{vS}, v{vS}, v{vQ}")
    A(f"v_max_f32 v{vQ}, 0, v{vQ}")
    L_ += rbf1(t0, vS)
    L_ += rbf1(t1, vQ)
    A(f"v_add_f32 v{t1}, {f32hex(1e-5)}, v{t1}")
    L_ += rbf1(t1, t1)
    A(f"v_sqrt_f32 v{t1}, v{t1}")
    L_ += rbf1(t1, t1)
    A(f"v_rcp_f32 v{va}, v{t1}")
    if not double:
        A(f"v_mul_f32 v{vc}, v{t0}, v{va}")
        return L_
    A(f"v_sub_f32 v{t2}, v{vS}, v{t0}")
    A(f"v_mul_f32 v{t2}, v{t2}, v{va}")
    L_ += rbf1(t2, t2)
    A(f"v_mul_f32 v{t3}, v{vQ}, v{va}")
    A(f"v_mul_f32 v{t3}, v{t3}, v{va}")
    L_ += rbf1(t3, t3)
    A(f"v_add_f32 v{t3}, {f32hex(1e-5)}, v{t3}")
    L_ += rbf1(t3, t3)
    A(f"v_sqrt_f32 v{t3}, v{t3}")
    L_ += rbf1(t3, t3)
    A(f"v_rcp_f32 v{t3}, v{t3}")
    A(f"v_fma_f32 v{vc}, v{t0}, v{va}, v{t2}")
    A(f"v_mul_f32 v{vc}, v{vc}, v{t3}")
    A(f"v_mul_f32 v{va}, v{va}, v{t3}")
    return L_

def gen_k3(name, layer):
    a = layer == "a"
    XOFF = L.X1F if a else L.X3F
    STOFF = L.ST1 if a else L.ST3
    HOFF = L.HFA if a else L.HFB
    WB, AUX, CSX = 65536, 114688, 115712
    D, NST = 5, 8
    k = Kernel(name)
    prologue(k)
    map_wg(k)
    lane_setup(k)
    k("v_lshrrev_b32 v15, 3, v1")
    k("v_and_b32 v16, 7, v1")
    k("v_lshrrev_b32 v17, 1, v16")
    k("v_lshrrev_b32 v18, 1, v15")
    k("v_and_b32 v18, 3, v18")
    k("v_xor_b32 v17, v17, v18")
    k("v_and_b32 v16, 1, v16")
    k("v_lshlrev_b32 v16, 4, v16")
    k("v_lshl_add_u32 v16, v17, 5, v16")
    k("v_mul_u32_u24 v15, 3584, v15")
    k("v_add_u32 v13, v15, v16")
    k("s_mul_i32 s10, s7, 224")
    k("s_mul_i32 s11, s3, %d" % (8 * 3584))
    k("s_add_u32 s11, s11, s10")
    k("s_lshl_b32 s12, s45, 14")
    k(f"s_add_u32 s12, s12, {XOFF}")
    k("s_lshl_b32 s48, s3, 10")
    k("v_add_u32 v17, 16384, v5")
    k("s_waitcnt lgkmcnt(0)")
    k.stamp()
    add64(k, 40, S_W1, "s11")
    add64(k, 46, S_WS, "s12")
    def issueA(s):
        L_ = []
        for kk in range(2):
            p = 2 * s + kk
            L_.append(f"global_load_dwordx4 a[{areg(0,p)}:{areg(0,p)+3}], v5, s[46:47] offset:{kk*1024}")
            L_.append(f"global_load_dwordx4 a[{areg(1,p)}:{areg(1,p)+3}], v17, s[46:47] offset:{kk*1024}")
            L_.append(f"s_add_u32 m0, s48, {p*4096}")
            L_.append("global_load_lds_dwordx4 v13, s[40:41]")
            L_.append(f"s_add_u32 s40, s40, {32*3584}")
            L_.append("s_addc_u32 s41, s41, 0")
        L_.append("s_add_u32 s46, s46, 2048")
        L_.append("s_addc_u32 s47, s47, 0")
        return L_
    for s in range(D):
        emit(k, issueA(s))
    for j in range(3):
        k(f"v_add_u32 v14, {j*64}, v1")
        k("v_mul_u32_u24 v15, 10923, v14")
        k("v_lshrrev_b32 v15, 16, v15")
        k("v_mul_u32_u24 v16, 6, v15")
        k("v_sub_u32 v16, v14, v16")
        k("v_mul_u32_u24 v15, 3584, v15")
        k(f"v_lshl_add_u32 v{20+j}, v16, 4, v15")
    k("s_mul_i32 s11, s3, %d" % (32 * 3584))
    k("s_add_u32 s11, s11, s10")
    k("s_add_u32 s11, s11, 128")
    add64(k, 42, S_W1, "s11")
    k("s_mul_i32 s49, s3, 3072")
    k(f"s_add_u32 s49, s49, {WB}")
    def issueB(q):
        L_ = []
        for j in range(3):
            L_.append(f"s_add_u32 m0, s49, {q*4*3072+j*1024}")
            L_.append(f"global_load_lds_dwordx4 v{20+j}, s[42:43]")
        L_.append(f"s_add_u32 s42, s42, {4*32*3584}")
        L_.append("s_addc_u32 s43, s43, 0")
        return L_
    k("v_lshrrev_b32 v16, 1, v8")
    k("v_and_b32 v16, 3, v16")
    k("v_lshlrev_b32 v18, 7, v8")
    k("v_lshl_add_u32 v18, v7, 3, v18")
    for nt in range(4):
        k(f"v_xor_b32 v19, {nt}, v16")
        k(f"v_lshl_add_u32 v{9+nt}, v19, 5, v18")
    k("v_xor_b32 v19, s3, v16")
    k("v_lshl_add_u32 v23, v19, 5, v18")
    k("v_mul_u32_u24 v24, 96, v8")
    k("v_lshl_add_u32 v24, v7, 3, v24")
    k(f"v_add_u32 v24, {WB}, v24")
    k("s_min_u32 s10, s3, 2")
    k("s_lshl_b32 s10, s10, 5")
    k("v_add_u32 v25, s10, v24")
    for j in range(4):
        k(f"v_mov_b32 v{ONES+j}, 0x3f803f80")
    def accA(i, nt): return ACCA + (i * 4 + nt) * 4
    def accB(i, nt): return ACCB + (i * 3 + nt) * 4
    def readsA(s):
        L_ = []
        fb = FR + (s & 1) * 40
        for kk in range(2):
            p = 2 * s + kk
            for nt in range(5):
                ad = 9 + nt if nt < 4 else 23
                for t1 in range(2):
                    L_.append(f"ds_read_b64_tr_b16 {vr(fb+(kk*5+nt)*4+t1*2,2)}, v{ad} offset:{p*4096+t1*2048}")
        return L_
    def mfmasA(s):
        L_ = []
        fb = FR + (s & 1) * 40
        for kk in range(2):
            p = 2 * s + kk
            for nt in range(4):
                for i in range(2):
                    c = "0" if p == 0 else vr(accA(i, nt), 4)
                    L_.append(f"v_mfma_f32_16x16x32_bf16 {vr(accA(i,nt),4)}, {vr(fb+(kk*5+nt)*4,4)}, a[{areg(i,p)}:{areg(i,p)+3}], {c}")
            c = "0" if p == 0 else vr(CSA, 4)
            L_.append(f"v_mfma_f32_16x16x32_bf16 {vr(CSA,4)}, {vr(fb+(kk*5+4)*4,4)}, {vr(ONES,4)}, {c}")
        return L_
    misc = ["s_lshl_b32 s10, s45, 11", f"s_add_u32 s10, s10, {STOFF}", f"s_add_u32 s50, s{S_WS}, s10", f"s_addc_u32 s51, s{S_WS+1}, 0"]
    for j in range(4):
        misc.append(f"global_load_dwordx4 {vr(TMP+j*4,4)}, v5, s[50:51] offset:{j*1024}")
    misc += ["s_mul_i32 s10, s7, 224", f"s_add_u32 s52, s{S_B1}, s10", f"s_addc_u32 s53, s{S_B1+1}, 0", f"s_mov_b32 m0, {AUX}",
             ["s_mov_b64 exec, 0x3fff", "global_load_lds_dwordx4 v5, s[52:53]", "s_mov_b64 exec, -1"]]
    issued = [6] * D
    def outstanding_after(idx):
        return sum(issued[idx + 1:])
    for s in range(NST):
        k(f"s_waitcnt vmcnt({outstanding_after(s)}) lgkmcnt(0)")
        k("s_barrier")
        k.stamp()
        side = readsA(s)
        if s + D < NST:
            side = interleave(side, issueA(s + D)); issued.append(6)
        elif s + D - NST < 4:
            q = s + D - NST
            ext = issueB(q)
            n = 3
            if q == 0:
                ext = misc + ext; n += 5
            side = interleave(side, ext); issued.append(n)
        emit(k, interleave(mfmasA(s - 1), side) if s > 0 else side)
    k("s_waitcnt lgkmcnt(0)")
    emit(k, mfmasA(NST - 1))
    k(f"v_add_u32 v26, {CSX}, v5")
    k("v_add_u32 v27, s48, v26")
    k(f"s_waitcnt vmcnt({outstanding_after(NST)})")
    for i in range(2):
        t = TMP + i * 8
        k(f"v_pk_add_f32 {vr(t,2)}, {vr(t,2)}, {vr(t+2,2)}")
        k(f"v_pk_add_f32 {vr(t+4,2)}, {vr(t+4,2)}, {vr(t+6,2)}")
        k(f"v_pk_add_f32 {vr(t,2)}, {vr(t,2)}, {vr(t+4,2)}")
    k(f"ds_write_b128 v27, {vr(CSA,4)}")
    emit(k, red4([TMP, TMP + 1, TMP + 8, TMP + 9], (0, 0), "v_add_f32"))
    emit(k, interleave(ln_list(TMP, TMP + 1, 16, 17, TMP + 2, TMP + 3, TMP + 4, TMP + 5, True),
                       ln_list(TMP + 8, TMP + 9, 18, 19, TMP + 10, TMP + 11, TMP + 12, TMP + 13, True)))
    k("s_waitcnt vmcnt(0) lgkmcnt(0)")
    k("s_barrier")
    k.stamp()
    k("s_lshr_b32 s10, s7, 1")
    k("s_mul_i32 s10, s10, 7")
    k("s_and_b32 s11, s7, 1")
    k("s_mul_i32 s12, s11, 3")
    k("s_add_u32 s12, s12, s10")
    k("s_mul_i32 s13, s45, 56")
    k("s_add_u32 s12, s12, s13")
    k("s_lshl_b32 s12, s12, 10")
    k(f"s_add_u32 s12, s12, {HOFF}")
    add64(k, 54, S_WS, "s12")
    k("s_add_u32 s10, s10, s13")
    k("s_add_u32 s10, s10, 6")
    k("s_lshl_b32 s10, s10, 10")
    k("s_lshl_b32 s11, s11, 3")
    k("s_add_u32 s10, s10, s11")
    k(f"s_add_u32 s10, s10, {HOFF}")
    add64(k, 56, S_WS, "s10")
    k("v_add_u32 v14, 57344, v5")
    K0 = 2 * 0.7978845608028654 * LOG2E
    K1 = K0 * 0.044715
    k(f"v_mov_b32 v20, {f32hex(-K1)}")
    k(f"v_mov_b32 v21, {f32hex(-K0)}")
    k("v_mov_b32 v22, 1.0")
    k(f"v_lshl_add_u32 v15, v4, 3, 0")
    k(f"v_add_u32 v15, {AUX}, v15")
    CSV, BI, OUTP, T = TMP, TMP + 16, TMP + 32, TMP + 48
    def load_cs_bias(nt0, n):
        L_ = []
        for j in range(n):
            L_.append(f"ds_read_b128 {vr(CSV+j*4,4)}, v26 offset:{(nt0+j)*1024}")
            L_.append(f"ds_read_b64 {vr(T+j*2,2)}, v15 offset:{(nt0+j)*32}")
        return L_
    def unpack_bias(n):
        L_ = []
        for j in range(n):
            for h in range(2):
                L_.append(f"v_lshlrev_b32 v{BI+j*4+2*h}, 16, v{T+j*2+h}")
                L_.append(f"v_and_b32 v{BI+j*4+2*h+1}, 0xffff0000, v{T+j*2+h}")
        return L_
    def gelu_tiles(accf, n, nt0, packed=True):
        L_ = []
        cnt = 0
        for j in range(n):
            for i in range(2):
                ac = vr(16 + 2 * i, 2)
                va, vc = 16 + 2 * i, 17 + 2 * i
                for h in range(2):
                    a_ = accf(i, j) + 2 * h
                    t = T + 8 + (cnt % 4) * 4
                    cnt += 1
                    o = OUTP + ((j >> 1) & 1) * 8 + i * 4 + (j & 1) * 2 + h
                    if packed:
                        L_.append(f"v_pk_fma_f32 {vr(t,2)}, {vr(CSV+j*4+2*h,2)}, {ac}, {vr(BI+j*4+2*h,2)} op_sel:[0,1,0] op_sel_hi:[1,1,1] neg_lo:[1,0,0] neg_hi:[1,0,0]")
                        L_.append(f"v_pk_fma_f32 {vr(a_,2)}, {vr(a_,2)}, {ac}, {vr(t,2)} op_sel_hi:[1,0,1]")
                        L_.append(f"v_cvt_pk_bf16_f32 v{a_}, 0, v{a_}")
                        L_.append(f"v_cvt_pk_bf16_f32 v{a_+1}, 0, v{a_+1}")
                        L_.append(f"v_pk_mul_f32 {vr(t,2)}, {vr(a_,2)}, {vr(a_,2)}")
                        L_.append(f"v_pk_fma_f32 {vr(t,2)}, {vr(t,2)}, v[20:21], v[20:21] op_sel:[0,0,1] op_sel_hi:[1,0,1]")
                        L_.append(f"v_pk_mul_f32 {vr(t,2)}, {vr(t,2)}, {vr(a_,2)}")
                        L_.append(f"v_exp_f32 v{t}, v{t}")
                        L_.append(f"v_exp_f32 v{t+1}, v{t+1}")
                        L_.append(f"v_pk_add_f32 {vr(t,2)}, {vr(t,2)}, v[22:23] op_sel_hi:[1,0]")
                        L_.append(f"v_rcp_f32 v{t}, v{t}")
                        L_.append(f"v_rcp_f32 v{t+1}, v{t+1}")
                        L_.append(f"v_pk_mul_f32 {vr(t,2)}, {vr(t,2)}, {vr(a_,2)}")
                    else:
                        for e in range(2):
                            L_.append(f"v_fma_f32 v{t+e}, -v{CSV+j*4+2*h+e}, v{vc}, v{BI+j*4+2*h+e}")
                        for e in range(2):
                            L_.append(f"v_fma_f32 v{a_+e}, v{a_+e}, v{va}, v{t+e}")
                        for e in range(2):
                            L_.append(f"v_cvt_pk_bf16_f32 v{a_+e}, 0, v{a_+e}")
                        for e in range(2):
                            L_.append(f"v_mul_f32 v{t+e}, v{a_+e}, v{a_+e}")
                        for e in range(2):
                            L_.append(f"v_fma_f32 v{t+e}, v{t+e}, v20, v21")
                        for e in range(2):
                            L_.append(f"v_mul_f32 v{t+e}, v{t+e}, v{a_+e}")
                        for e in range(2):
                            L_.append(f"v_exp_f32 v{t+e}, v{t+e}")
                        for e in range(2):
                            L_.append(f"v_add_f32 v{t+e}, 1.0, v{t+e}")
                        for e in range(2):
                            L_.append(f"v_rcp_f32 v{t+e}, v{t+e}")
                        for e in range(2):
                            L_.append(f"v_mul_f32 v{t+e}, v{t+e}, v{a_+e}")
                    L_.append(f"v_cvt_pk_bf16_f32 v{o}, v{t}, v{t+1}")
            nt = nt0 + j
            ob = OUTP + ((j >> 1) & 1) * 8
            if nt in (1, 3, 5):
                L_.append(f"global_store_dwordx4 v5, {vr(ob,4)}, s[54:55] offset:{(nt//2)*1024}")
                L_.append(f"global_store_dwordx4 v14, {vr(ob+4,4)}, s[54:55] offset:{(nt//2)*1024}")
            if nt == 6:
                L_.append(f"global_store_dwordx2 v5, {vr(ob,2)}, s[56:57]")
                L_.append(f"global_store_dwordx2 v14, {vr(ob+4,2)}, s[56:57]")
        return L_
    def readsB(s):
        L_ = []
        fb = FR + (s & 1) * 40
        for kk in range(2):
            p = 2 * s + kk
            for nt in range(4):
                for t1 in range(2):
                    if nt < 3:
                        L_.append(f"ds_read_b64_tr_b16 {vr(fb+(kk*4+nt)*4+t1*2,2)}, v24 offset:{p*3072+t1*1536+nt*32}")
                    else:
                        L_.append(f"ds_read_b64_tr_b16 {vr(fb+(kk*4+nt)*4+t1*2,2)}, v25 offset:{p*3072+t1*1536}")
        return L_
    def mfmasB(s):
        L_ = []
        fb = FR + (s & 1) * 40
        for kk in range(2):
            p = 2 * s + kk
            for nt in range(3):
                for i in range(2):
                    c = "0" if p == 0 else vr(accB(i, nt), 4)
                    L_.append(f"v_mfma_f32_16x16x32_bf16 {vr(accB(i,nt),4)}, {vr(fb+(kk*4+nt)*4,4)}, a[{areg(i,p)}:{areg(i,p)+3}], {c}")
            c = "0" if p == 0 else vr(CSA + 4, 4)
            L_.append(f"v_mfma_f32_16x16x32_bf16 {vr(CSA+4,4)}, {vr(fb+(kk*4+3)*4,4)}, {vr(ONES,4)}, {c}")
        return L_
    emit(k, load_cs_bias(0, 4))
    emit(k, readsB(0))
    k("s_waitcnt lgkmcnt(0)")
    epiA = unpack_bias(4) + gelu_tiles(accA, 4, 0, packed=False)
    chunk = (len(epiA) + 7) // 8
    for s in range(8):
        side = (readsB(s + 1) if s < 7 else []) + epiA[s * chunk:(s + 1) * chunk]
        emit(k, interleave(mfmasB(s), side))
        k("s_waitcnt lgkmcnt(0)")
    k(f"ds_write_b128 v27, {vr(CSA+4,4)} offset:4096")
    k("s_waitcnt lgkmcnt(0)")
    k("s_barrier")
    k.stamp()
    emit(k, load_cs_bias(4, 3))
    k("s_waitcnt lgkmcnt(0)")
    emit(k, unpack_bias(3) + gelu_tiles(accB, 3, 4))
    finish(k)
    return k, CSX + 8192, 256 + 128
```

```python
from v2_common import *
from k13v2 import ln_list

ONES = 28
ACCA, ACCB, CSA = 32, 64, 96
FR = 104
TMP = 184
WB, AUX = 65536, 131072
CSX = AUX + 4096
KVS = AUX + 12288
def areg(i, p): return (i * 16 + p) * 4
def accA(i, nt): return ACCA + (i * 4 + nt) * 4
def accB(i, nt): return ACCB + (i * 4 + nt) * 4

def gen(name, kind, layer):
    k1 = kind == "k1"
    a = layer == "a"
    first = k1 and a
    NC2 = 6 if k1 else 7
    RS = 3072 if k1 else 3584
    WPTR = S_WQKV if k1 else S_W1
    D, NST = (3 if first else 4), 8
    k = Kernel(name)
    prologue(k, nwg=16 * 2 * NC2)
    k("s_and_b32 s8, s2, 7")
    k("s_lshr_b32 s9, s2, 3")
    k("s_lshr_b32 s6, s8, 1")
    k("s_lshl_b32 s6, s6, 2")
    k("s_and_b32 s10, s9, 3")
    k("s_add_u32 s6, s6, s10")
    k("s_and_b32 s7, s8, 1")
    k(f"s_mul_i32 s7, s7, {NC2}")
    k("s_lshr_b32 s10, s9, 2")
    k("s_add_u32 s7, s7, s10")
    k("s_lshl_b32 s10, s6, 3")
    k("s_lshl_b32 s11, s3, 1")
    k("s_add_u32 s45, s10, s11")
    lane_setup(k)
    if k1:
        k("s_lshl_b32 s4, s7, 8")
        k("s_add_u32 s5, s4, 128")
        k("s_sub_u32 s10, s7, 4")
        k("s_lshl_b32 s10, s10, 7")
        k("s_add_u32 s11, s10, 1024")
        k("s_add_u32 s12, s10, 2048")
        k("s_cmp_ge_u32 s7, 4")
        k("s_cselect_b32 s4, s11, s4")
        k("s_cselect_b32 s5, s12, s5")
    else:
        k("s_lshl_b32 s4, s7, 8")
        k("s_add_u32 s5, s4, 128")
    k("v_lshrrev_b32 v15, 3, v1")
    k("v_and_b32 v16, 7, v1")
    k("v_lshrrev_b32 v17, 1, v16")
    k("v_lshrrev_b32 v18, 1, v15")
    k("v_and_b32 v18, 3, v18")
    k("v_xor_b32 v17, v17, v18")
    k("v_and_b32 v16, 1, v16")
    k("v_lshlrev_b32 v16, 4, v16")
    k("v_lshl_add_u32 v16, v17, 5, v16")
    if first:
        k("s_lshl_b32 s10, s3, 3")
        k("v_add_u32 v19, s10, v15")
        k("v_and_b32 v20, 15, v19")
        k("v_lshrrev_b32 v20, 2, v20")
        k("v_lshlrev_b32 v20, 3, v20")
        k("v_and_b32 v21, 3, v19")
        k("v_add_u32 v20, v20, v21")
        k("v_lshrrev_b32 v21, 4, v19")
        k("v_lshl_add_u32 v20, v21, 2, v20")
        k(f"v_mul_u32_u24 v13, {RS}, v20")
        k("v_add_u32 v13, v13, v16")
        k("s_mov_b32 s11, s4")
    else:
        k(f"v_mul_u32_u24 v13, {RS}, v15")
        k("v_add_u32 v13, v13, v16")
        k(f"s_mul_i32 s11, s3, {8*RS}")
        k("s_add_u32 s11, s11, s4")
    k("s_lshl_b32 s48, s3, 10")
    if first:
        k("v_and_b32 v19, 7, v1")
        k("v_xor_b32 v19, v19, v15")
        k("v_lshlrev_b32 v19, 4, v19")
        k("v_lshl_add_u32 v17, v15, 10, v19")
        k("s_lshl_b32 s12, s45, 14")
        k("s_lshl_b32 s49, s3, 14")
        k(f"s_add_u32 s49, s49, {WB}")
    else:
        XOFF = {("k1", "b"): L.X2F, ("k3", "a"): L.X1F, ("k3", "b"): L.X3F}[(kind, layer)]
        k("s_lshl_b32 s12, s45, 14")
        k(f"s_add_u32 s12, s12, {XOFF}")
        k("v_add_u32 v17, 16384, v5")
    k("s_waitcnt lgkmcnt(0)")
    k.stamp()
    add64(k, 40, WPTR, "s11")
    add64(k, 46, S_X if first else S_WS, "s12")
    def issueA(s):
        L_ = []
        if first:
            for ii in range(4):
                L_.append(f"s_add_u32 s50, s46, {ii*8192}")
                L_.append("s_addc_u32 s51, s47, 0")
                L_.append(f"s_add_u32 m0, s49, {(s%4)*4096+ii*1024}")
                L_.append("global_load_lds_dwordx4 v17, s[50:51]")
            L_.append("s_add_u32 s46, s46, 128")
            L_.append("s_addc_u32 s47, s47, 0")
        for kk in range(2):
            p = 2 * s + kk
            if not first:
                L_.append(f"global_load_dwordx4 a[{areg(0,p)}:{areg(0,p)+3}], v5, s[46:47] offset:{kk*1024}")
                L_.append(f"global_load_dwordx4 a[{areg(1,p)}:{areg(1,p)+3}], v17, s[46:47] offset:{kk*1024}")
            L_.append(f"s_add_u32 m0, s48, {p*4096}")
            L_.append("global_load_lds_dwordx4 v13, s[40:41]")
            L_.append(f"s_add_u32 s40, s40, {32*RS}")
            L_.append("s_addc_u32 s41, s41, 0")
        if not first:
            L_.append("s_add_u32 s46, s46, 2048")
            L_.append("s_addc_u32 s47, s47, 0")
        return L_
    for s in range(D):
        emit(k, issueA(s))
    if first:
        for ii in range(4):
            k(f"v_add_u32 v19, {8*ii}, v15")
            k("v_and_b32 v20, 15, v19")
            k("v_lshrrev_b32 v20, 2, v20")
            k("v_lshlrev_b32 v20, 3, v20")
            k("v_and_b32 v21, 3, v19")
            k("v_add_u32 v20, v20, v21")
            k(f"v_add_u32 v20, {(ii>>1)*4}, v20")
            k(f"v_mul_u32_u24 v20, {RS}, v20")
            k(f"v_add_u32 v{TMP+60+ii}, v20, v16")
        k(f"s_mul_i32 s11, s3, {32*RS}")
        k("s_add_u32 s11, s11, s5")
        add64(k, 42, WPTR, "s11")
        def issueB(q):
            L_ = []
            for ii in range(4):
                L_.append(f"s_add_u32 m0, s49, {q*4096+ii*1024}")
                L_.append(f"global_load_lds_dwordx4 v{TMP+60+ii}, s[42:43]")
            L_.append(f"s_add_u32 s42, s42, {4*32*RS}")
            L_.append("s_addc_u32 s43, s43, 0")
            return L_
        def boff(p): return (p & 3) * 16384 + (p >> 2) * 4096
    else:
        k(f"s_mul_i32 s11, s3, {8*RS}")
        k("s_add_u32 s11, s11, s5")
        add64(k, 42, WPTR, "s11")
        def issueB(q):
            L_ = []
            for kk in range(4):
                L_.append(f"s_add_u32 m0, s48, {WB+(4*q+kk)*4096}")
                L_.append("global_load_lds_dwordx4 v13, s[42:43]")
                L_.append(f"s_add_u32 s42, s42, {32*RS}")
                L_.append("s_addc_u32 s43, s43, 0")
            return L_
        def boff(p): return p * 4096
    k("v_lshrrev_b32 v16, 1, v8")
    k("v_and_b32 v16, 3, v16")
    k("v_lshlrev_b32 v18, 7, v8")
    k("v_lshl_add_u32 v18, v7, 3, v18")
    for nt in range(4):
        k(f"v_xor_b32 v14, {nt}, v16")
        k(f"v_lshl_add_u32 v{9+nt}, v14, 5, v18")
        k(f"v_add_u32 v{19+nt}, {WB}, v{9+nt}")
    k("v_xor_b32 v14, s3, v16")
    k("v_lshl_add_u32 v23, v14, 5, v18")
    k(f"v_add_u32 v24, {WB}, v23")
    if first:
        k("v_and_b32 v14, 7, v3")
        k("v_xor_b32 v15, v14, v4")
        k("v_lshlrev_b32 v16, 7, v3")
        k("v_lshl_add_u32 v25, v15, 4, v16")
        k("v_add_u32 v25, s49, v25")
        k("v_xor_b32 v26, 64, v25")
        for j in range(4):
            k(f"v_mov_b32 v{TMP+56+j}, 0")
    for j in range(4):
        k(f"v_mov_b32 v{ONES+j}, 0x3f803f80")
    def reads(s, grp):
        L_ = []
        fb = FR + (s & 1) * 40
        for kk in range(2):
            p = 2 * s + kk
            off = p * 4096 if grp == 0 else boff(p)
            for nt in range(5):
                ad = ((9 + nt) if nt < 4 else 23) if grp == 0 else ((19 + nt) if nt < 4 else 24)
                for t1 in range(2):
                    L_.append(f"ds_read_b64_tr_b16 {vr(fb+(kk*5+nt)*4+t1*2,2)}, v{ad} offset:{off+t1*2048}")
        return L_
    def mfmas(s, grp):
        L_ = []
        fb = FR + (s & 1) * 40
        acc = accA if grp == 0 else accB
        cs = CSA + 4 * grp
        for kk in range(2):
            p = 2 * s + kk
            for nt in range(4):
                for i in range(2):
                    c = "0" if p == 0 else vr(acc(i, nt), 4)
                    L_.append(f"v_mfma_f32_16x16x32_bf16 {vr(acc(i,nt),4)}, {vr(fb+(kk*5+nt)*4,4)}, a[{areg(i,p)}:{areg(i,p)+3}], {c}")
            c = "0" if p == 0 else vr(cs, 4)
            L_.append(f"v_mfma_f32_16x16x32_bf16 {vr(cs,4)}, {vr(fb+(kk*5+4)*4,4)}, {vr(ONES,4)}, {c}")
        return L_
    XT = TMP + 40
    def xreads(s):
        L_ = []
        for kk in range(2):
            p = 2 * s + kk
            for i in range(2):
                off = (s % 4) * 4096 + i * 2048
                L_.append(f"ds_read_b128 a[{areg(i,p)}:{areg(i,p)+3}], v{25+kk} offset:{off}")
                L_.append(f"ds_read_b128 {vr(XT+(kk*2+i)*4,4)}, v{25+kk} offset:{off}")
        return L_
    def xstats():
        L_ = []
        for kk in range(2):
            for i in range(2):
                for j in range(4):
                    x = XT + (kk * 2 + i) * 4 + j
                    L_.append(f"v_dot2_f32_bf16 v{TMP+56+2*i}, v{x}, v{ONES}, v{TMP+56+2*i}")
                    L_.append(f"v_dot2_f32_bf16 v{TMP+57+2*i}, v{x}, v{x}, v{TMP+57+2*i}")
        return L_
    misc = []
    nmisc = 0
    if not first:
        STOFF = {("k1", "b"): L.ST2, ("k3", "a"): L.ST1, ("k3", "b"): L.ST3}[(kind, layer)]
        misc += ["s_lshl_b32 s10, s45, 11", f"s_add_u32 s10, s10, {STOFF}", f"s_add_u32 s50, s{S_WS}, s10", f"s_addc_u32 s51, s{S_WS+1}, 0"]
        for j in range(4):
            if k1 and (j & 1):
                continue
            misc.append(f"global_load_dwordx4 {vr(TMP+j*4,4)}, v5, s[50:51] offset:{j*1024}")
            nmisc += 1
    if k1:
        misc += ["s_lshl_b32 s10, s7, 12", "s_sub_u32 s11, s7, 4", "s_lshl_b32 s11, s11, 11", "s_cmp_ge_u32 s7, 4", "s_cselect_b32 s10, s11, s10",
                 "s_min_u32 s11, s10, 12288", "s_sub_u32 s44, s10, s11", "s_add_u32 s11, s11, s48",
                 f"s_add_u32 s52, s{S_WPHI}, s11", f"s_addc_u32 s53, s{S_WPHI+1}, 0", f"s_add_u32 m0, s48, {AUX}",
                 "global_load_lds_dwordx4 v5, s[52:53]"]
    else:
        misc += ["s_lshl_b32 s10, s7, 8", f"s_add_u32 s52, s{S_B1}, s10", f"s_addc_u32 s53, s{S_B1+1}, 0", f"s_mov_b32 m0, {AUX}",
                 ["s_mov_b64 exec, 0xffff", "global_load_lds_dwordx4 v5, s[52:53]", "s_mov_b64 exec, -1"]]
    nmisc += 1
    issued = [6] * D
    def outstanding_after(idx): return sum(issued[idx + 1:])
    nb = 0
    for s in range(NST):
        k(f"s_waitcnt vmcnt({outstanding_after(s)}) lgkmcnt(0)")
        k("s_barrier")
        k.stamp()
        pre = []
        if first:
            if s > 0:
                pre = xstats()
            side = pre + xreads(s) + reads(s, 0)
        else:
            side = reads(s, 0)
        ext, n = [], 0
        if s + D < NST:
            ext, n = issueA(s + D), 6
        else:
            if s + D == NST:
                ext, n = list(misc), nmisc
            if not first:
                ext += issueB(nb); n += 4; nb += 1
            elif s >= 5:
                ext += issueB(nb); n += 4; nb += 1
        if ext:
            side = interleave(side, ext); issued.append(n)
        emit(k, interleave(mfmas(s - 1, 0), side) if s > 0 else side)
    misc_idx = NST
    k("s_waitcnt lgkmcnt(0)")
    tail = []
    while nb < 4:
        tail += issueB(nb); issued.append(4); nb += 1
    if first:
        tail += xstats()
    emit(k, interleave(mfmas(NST - 1, 0), tail))
    if first:
        lz = k.newlabel("z")
        k("s_cmp_lg_u32 s6, 0")
        k(f"s_cbranch_scc1 {lz}")
        k("s_cmp_lt_u32 s7, 4")
        k(f"s_cbranch_scc1 {lz}")
        k.begin_cond()
        for j in range(4):
            k(f"v_mov_b32 v{XT+j}, 0")
        k("s_sub_u32 s10, s7, 4")
        k("s_lshl_b32 s11, s10, 13")
        k("s_lshl_b32 s12, s3, 11")
        k("s_add_u32 s11, s11, s12")
        k(f"s_add_u32 s11, s11, {L.KVA}")
        add64(k, 54, S_WS, "s11")
        k(f"global_store_dwordx4 v5, {vr(XT,4)}, s[54:55] sc1")
        k(f"global_store_dwordx4 v5, {vr(XT,4)}, s[54:55] offset:1024 sc1")
        k("s_lshl_b32 s11, s10, 9")
        k("s_lshl_b32 s12, s3, 7")
        k("s_add_u32 s11, s11, s12")
        k(f"s_add_u32 s11, s11, {L.ZA}")
        add64(k, 54, S_WS, "s11")
        k("v_lshlrev_b32 v14, 2, v1")
        k("s_mov_b64 exec, 0xffffffff")
        k(f"global_store_dword v14, v{XT}, s[54:55] sc1")
        k("s_mov_b64 exec, -1")
        k("s_waitcnt vmcnt(0)")
        k("s_lshl_b32 s10, s10, 2")
        k("v_mov_b32 v14, s10")
        k("v_mov_b32 v15, 1")
        k("s_mov_b64 exec, 1")
        k("global_atomic_add v14, v15, s[36:37] sc1")
        k("s_mov_b64 exec, -1")
        k.end_cond()
        k.label(lz)
    k(f"v_add_u32 v26, {CSX}, v5")
    k("v_add_u32 v27, s48, v26")
    k(f"ds_write_b128 v27, {vr(CSA,4)}")
    if first:
        S0, Q0, S1, Q1 = TMP + 56, TMP + 57, TMP + 58, TMP + 59
    else:
        k(f"s_waitcnt vmcnt({outstanding_after(misc_idx)})")
        for i in range(2):
            t = TMP + i * 8
            k(f"v_pk_add_f32 {vr(t,2)}, {vr(t,2)}, {vr(t+2,2)}")
            if not k1:
                k(f"v_pk_add_f32 {vr(t+4,2)}, {vr(t+4,2)}, {vr(t+6,2)}")
                k(f"v_pk_add_f32 {vr(t,2)}, {vr(t,2)}, {vr(t+4,2)}")
        S0, Q0, S1, Q1 = TMP, TMP + 1, TMP + 8, TMP + 9
    emit(k, red4([S0, Q0, S1, Q1], (0, 0), "v_add_f32"))
    emit(k, interleave(ln_list(S0, Q0, 16, 17, TMP + 2, TMP + 3, TMP + 4, TMP + 5, not k1),
                       ln_list(S1, Q1, 14, 15, TMP + 10, TMP + 11, TMP + 12, TMP + 13, not k1)))
    AC = [(16, 17), (14, 15)]
    if first:
        lx = k.newlabel("xf")
        k("s_lshr_b32 s10, s7, 1")
        k("s_cmp_lg_u32 s10, s3")
        k(f"s_cbranch_scc1 {lx}")
        k.begin_cond()
        k(f"v_lshlrev_b32 v{XT}, 1, v4")
        k(f"v_and_b32 v{XT}, 3, v{XT}")
        k(f"v_lshl_add_u32 v{XT}, v{XT}, 4, v3")
        k(f"v_lshlrev_b32 v{XT}, 4, v{XT}")
        k(f"v_lshrrev_b32 v{XT+1}, 1, v4")
        k(f"v_lshl_add_u32 v{XT}, v{XT+1}, 3, v{XT}")
        for j in range(1, 4):
            k(f"v_add_u32 v{XT+j}, {4096*j}, v{XT}")
        k("s_and_b32 s10, s7, 1")
        k("s_add_u32 s11, s45, s10")
        k("s_lshl_b32 s11, s11, 14")
        k(f"s_add_u32 s11, s11, {L.XF0}")
        add64(k, 54, S_WS, "s11")
        l1, l2 = k.newlabel("xi"), k.newlabel("xe")
        k("s_cmp_eq_u32 s10, 1")
        k(f"s_cbranch_scc1 {l1}")
        for i in range(2):
            if i == 1:
                k.label(l1)
            for p in range(16):
                k(f"global_store_dwordx2 v{XT+(p>>2)}, a[{areg(i,p)}:{areg(i,p)+1}], s[54:55] offset:{(p&3)*1024}")
                k(f"global_store_dwordx2 v{XT+(p>>2)}, a[{areg(i,p)+2}:{areg(i,p)+3}], s[54:55] offset:{(p&3)*1024+256}")
            if i == 0:
                k(f"s_branch {l2}")
        k.label(l2)
        k.end_cond()
        k.label(lx)
    k("s_waitcnt vmcnt(0) lgkmcnt(0)")
    k("s_barrier")
    k.stamp()
    ctx = dict(k=k, layer=layer, first=first, AC=AC, reads=reads, mfmas=mfmas)
    if k1:
        import k1epi
        k1epi.phaseB(ctx)
    else:
        k3_phaseB(ctx)
    finish(k)
    return k, AUX + 16384, 256 + 128


def gemmB_with(ctx, epi):
    k, reads, mfmas = ctx["k"], ctx["reads"], ctx["mfmas"]
    chunk = (len(epi) + 7) // 8
    for s in range(8):
        side = (reads(s + 1, 1) if s < 7 else []) + epi[s * chunk:(s + 1) * chunk]
        emit(k, interleave(mfmas(s, 1), side))
        k("s_waitcnt lgkmcnt(0)")


def k3_phaseB(ctx):
    k, layer, AC = ctx["k"], ctx["layer"], ctx["AC"]
    HOFF = L.HFA if layer == "a" else L.HFB
    k("s_mul_i32 s13, s45, 56")
    k("s_lshl_b32 s12, s7, 2")
    k("s_add_u32 s12, s12, s13")
    k("s_lshl_b32 s12, s12, 10")
    k(f"s_add_u32 s12, s12, {HOFF}")
    add64(k, 54, S_WS, "s12")
    k("v_add_u32 v18, 57344, v5")
    K0 = 2 * 0.7978845608028654 * LOG2E
    K1 = K0 * 0.044715
    CSV, BI, OUTP, T = TMP, TMP + 16, TMP + 32, TMP + 48
    KC = TMP + 68
    k(f"v_mov_b32 v{KC}, {f32hex(-K1)}")
    k(f"v_mov_b32 v{KC+1}, {f32hex(-K0)}")
    k(f"v_mov_b32 v{KC+2}, 1.0")
    k(f"v_lshl_add_u32 v13, v4, 3, 0")
    k(f"v_add_u32 v13, {AUX}, v13")
    def load_cs_bias(nt0):
        L_ = []
        for j in range(4):
            L_.append(f"ds_read_b128 {vr(CSV+j*4,4)}, v26 offset:{(nt0+j)*1024}")
            L_.append(f"ds_read_b64 {vr(T+j*2,2)}, v13 offset:{(nt0+j)*32}")
        return L_
    def unpack_bias():
        L_ = []
        for j in range(4):
            for h in range(2):
                L_.append(f"v_lshlrev_b32 v{BI+j*4+2*h}, 16, v{T+j*2+h}")
                L_.append(f"v_and_b32 v{BI+j*4+2*h+1}, 0xffff0000, v{T+j*2+h}")
        return L_
    def gelu_tiles(accf, nt0, packed):
        L_ = []
        cnt = 0
        kc = vr(KC, 2)
        for j in range(4):
            for i in range(2):
                va, vc = AC[i]
                ac = vr(va, 2)
                for h in range(2):
                    a_ = accf(i, j) + 2 * h
                    t = T + 8 + (cnt % 3) * 4
                    cnt += 1
                    o = OUTP + ((j >> 1) & 1) * 8 + i * 4 + (j & 1) * 2 + h
                    if packed:
                        L_.append(f"v_pk_fma_f32 {vr(t,2)}, {vr(CSV+j*4+2*h,2)}, {ac}, {vr(BI+j*4+2*h,2)} op_sel:[0,1,0] op_sel_hi:[1,1,1] neg_lo:[1,0,0] neg_hi:[1,0,0]")
                        L_.append(f"v_pk_fma_f32 {vr(a_,2)}, {vr(a_,2)}, {ac}, {vr(t,2)} op_sel_hi:[1,0,1]")
                        L_.append(f"v_cvt_pk_bf16_f32 v{a_}, 0, v{a_}")
                        L_.append(f"v_cvt_pk_bf16_f32 v{a_+1}, 0, v{a_+1}")
                        L_.append(f"v_pk_mul_f32 {vr(t,2)}, {vr(a_,2)}, {vr(a_,2)}")
                        L_.append(f"v_pk_fma_f32 {vr(t,2)}, {vr(t,2)}, {kc}, {kc} op_sel:[0,0,1] op_sel_hi:[1,0,1]")
                        L_.append(f"v_pk_mul_f32 {vr(t,2)}, {vr(t,2)}, {vr(a_,2)}")
                        L_.append(f"v_exp_f32 v{t}, v{t}")
                        L_.append(f"v_exp_f32 v{t+1}, v{t+1}")
                        L_.append(f"v_pk_add_f32 {vr(t,2)}, {vr(t,2)}, {vr(KC+2,2)} op_sel_hi:[1,0]")
                        L_.append(f"v_rcp_f32 v{t}, v{t}")
                        L_.append(f"v_rcp_f32 v{t+1}, v{t+1}")
                        L_.append(f"v_pk_mul_f32 {vr(t,2)}, {vr(t,2)}, {vr(a_,2)}")
                    else:
                        for e in range(2):
                            L_.append(f"v_fma_f32 v{t+e}, -v{CSV+j*4+2*h+e}, v{vc}, v{BI+j*4+2*h+e}")
                        for e in range(2):
                            L_.append(f"v_fma_f32 v{a_+e}, v{a_+e}, v{va}, v{t+e}")
                        for e in range(2):
                            L_.append(f"v_cvt_pk_bf16_f32 v{a_+e}, 0, v{a_+e}")
                        for e in range(2):
                            L_.append(f"v_mul_f32 v{t+e}, v{a_+e}, v{a_+e}")
                        for e in range(2):
                            L_.append(f"v_fma_f32 v{t+e}, v{t+e}, v{KC}, v{KC+1}")
                        for e in range(2):
                            L_.append(f"v_mul_f32 v{t+e}, v{t+e}, v{a_+e}")
                        for e in range(2):
                            L_.append(f"v_exp_f32 v{t+e}, v{t+e}")
                        for e in range(2):
                            L_.append(f"v_add_f32 v{t+e}, 1.0, v{t+e}")
                        for e in range(2):
                            L_.append(f"v_rcp_f32 v{t+e}, v{t+e}")
                        for e in range(2):
                            L_.append(f"v_mul_f32 v{t+e}, v{t+e}, v{a_+e}")
                    L_.append(f"v_cvt_pk_bf16_f32 v{o}, v{t}, v{t+1}")
            if j & 1:
                ob = OUTP + ((j >> 1) & 1) * 8
                pr = (nt0 + j) // 2
                L_.append(f"global_store_dwordx4 v5, {vr(ob,4)}, s[54:55] offset:{pr*1024}")
                L_.append(f"global_store_dwordx4 v18, {vr(ob+4,4)}, s[54:55] offset:{pr*1024}")
        return L_
    emit(k, load_cs_bias(0))
    emit(k, ctx["reads"](0, 1))
    k("s_waitcnt lgkmcnt(0)")
    gemmB_with(ctx, unpack_bias() + gelu_tiles(accA, 0, False))
    k(f"ds_write_b128 v27, {vr(CSA+4,4)} offset:4096")
    k("s_waitcnt lgkmcnt(0)")
    k("s_barrier")
    k.stamp()
    emit(k, load_cs_bias(4))
    k("s_waitcnt lgkmcnt(0)")
    emit(k, unpack_bias() + gelu_tiles(accB, 4, True))
```

```python
from v2_common import *
import k13v3 as G

def phaseB(ctx):
    k, layer, first, AC = ctx["k"], ctx["layer"], ctx["first"], ctx["AC"]
    PHI = L.PHIQA if layer == "a" else L.PHIQB
    KV = L.KVA if layer == "a" else L.KVB
    ZZ = L.ZA if layer == "a" else L.ZB
    TMP, AUX, ONES = G.TMP, G.AUX, G.ONES
    CSV = TMP
    WP = TMP + 16
    PK = TMP + 24
    X = TMP + 28
    E = TMP + 36
    M = TMP + 52
    PH = TMP + 56
    LG = TMP + 64
    k(f"v_mov_b32 v{LG}, {f32hex(LOG2E)}")
    k("v_lshlrev_b32 v13, 5, v8")
    k("v_lshl_add_u32 v13, v7, 3, v13")
    k(f"s_add_u32 s10, s44, {AUX}")
    k("v_add_u32 v13, s10, v13")
    k("s_lshl_b32 s10, s45, 5")
    k("s_lshl_b32 s11, s7, 3")
    k("s_add_u32 s10, s10, s11")
    k("s_lshl_b32 s10, s10, 10")
    k(f"s_add_u32 s10, s10, {PHI}")
    add64(k, 54, S_WS, "s10")
    k("v_add_u32 v18, 32768, v5")
    k("v_add_u32 v9, 4096, v5")
    k("v_add_u32 v10, 36864, v5")
    k("s_lshl_b32 s10, s3, 5")
    k("v_add_u32 v11, s10, v3")
    k("v_lshlrev_b32 v11, 5, v11")
    k("v_lshl_add_u32 v11, v4, 3, v11")
    if first:
        k("s_sub_u32 s10, s7, 4")
        k("s_lshl_b32 s10, s10, 2")
        k("s_max_i32 s10, s10, 0")
        k("v_mov_b32 v12, s10")
    def load_cs_wp(grp):
        L_ = []
        for j in range(4):
            L_.append(f"ds_read_b128 {vr(CSV+j*4,4)}, v26 offset:{(grp*4+j)*1024}")
            L_.append(f"ds_read_b64_tr_b16 {vr(WP+j*2,2)}, v13 offset:{(grp*4+j)*512}")
        return L_
    def val_pack(accf, i, j, dst):
        va, vc = AC[i]
        L_ = []
        a_ = accf(i, j)
        for e in range(4):
            L_.append(f"v_mul_f32 v{a_+e}, v{a_+e}, v{va}")
        for e in range(4):
            L_.append(f"v_fma_f32 v{a_+e}, -v{CSV+j*4+e}, v{vc}, v{a_+e}")
        L_.append(f"v_cvt_pk_bf16_f32 v{dst}, v{a_}, v{a_+1}")
        L_.append(f"v_cvt_pk_bf16_f32 v{dst+1}, v{a_+2}, v{a_+3}")
        return L_
    def softmax_group(accf, grp, dest):
        L_ = []
        for i in range(2):
            for jp in range(2):
                for u in range(2):
                    j = jp * 2 + u
                    L_ += val_pack(accf, i, j, PK + u * 2)
                for u in range(2):
                    j = jp * 2 + u
                    L_.append(f"v_mfma_f32_16x16x16_bf16 {vr(X+u*4,4)}, {vr(WP+j*2,2)}, {vr(PK+u*2,2)}, 0")
                for u in range(2):
                    for e in range(4):
                        L_.append(f"v_cvt_pk_bf16_f32 v{X+u*4+e}, 0, v{X+u*4+e}")
                for u in range(2):
                    x = X + u * 4
                    L_.append(f"v_max3_f32 v{M+2*u}, v{x}, v{x+1}, v{x+2}")
                    L_.append(f"v_max3_f32 v{M+2*u+1}, -v{x}, -v{x+1}, -v{x+2}")
                    L_.append(f"v_max_f32 v{M+2*u}, v{M+2*u}, v{x+3}")
                    L_.append(f"v_max_f32 v{M+2*u+1}, v{M+2*u+1}, -v{x+3}")
                L_ += red4([M, M + 1, M + 2, M + 3], (0, 0), "v_max_f32")
                for e in range(4):
                    L_.append(f"v_mul_f32 v{M+e}, v{M+e}, v{LG}")
                for u in range(2):
                    for e in range(4):
                        L_.append(f"v_fma_f32 v{E+u*8+e}, v{X+u*4+e}, v{LG}, -v{M+2*u}")
                        L_.append(f"v_fma_f32 v{E+u*8+4+e}, -v{X+u*4+e}, v{LG}, -v{M+2*u+1}")
                for e in range(16):
                    L_.append(f"v_exp_f32 v{E+e}, v{E+e}")
                for q in range(4):
                    b = E + q * 4
                    L_.append(f"v_add_f32 v{M+q}, v{b}, v{b+1}")
                    L_.append(f"v_add_f32 v{X+q}, v{b+2}, v{b+3}")
                for q in range(4):
                    L_.append(f"v_add_f32 v{M+q}, v{M+q}, v{X+q}")
                L_ += red4([M, M + 1, M + 2, M + 3], (0, 0), "v_add_f32")
                for q in range(4):
                    L_.append(f"v_rcp_f32 v{M+q}, v{M+q}")
                for q in range(4):
                    for e in range(4):
                        L_.append(f"v_mul_f32 v{E+q*4+e}, v{E+q*4+e}, v{M+q}")
                for q in range(8):
                    L_.append(f"v_cvt_pk_bf16_f32 v{PH+q}, v{E+2*q}, v{E+2*q+1}")
                st_q, st_k = [], []
                for u in range(2):
                    j = jp * 2 + u
                    vo = [[5, 18], [9, 10]][grp][i]
                    st_q.append(f"global_store_dwordx4 v{vo}, {vr(PH+u*4,4)}, s[54:55] offset:{j*1024}")
                    st_k.append(f"ds_write_b64 v11, {vr(PH+u*4,2)} offset:{j*12288+i*512}")
                    st_k.append(f"ds_write_b64 v11, {vr(PH+u*4+2,2)} offset:{j*12288+4096+i*512}")
                if dest == "q":
                    L_ += st_q
                else:
                    L_.append(("BR", st_q, st_k))
        return L_
    def fix(lst):
        out = []
        for x in lst:
            if isinstance(x, tuple) and x[0] == "BR":
                out.append(BranchGroup(x[1], x[2]))
            else:
                out.append(x)
        return out
    emit(k, load_cs_wp(0))
    emit(k, ctx["reads"](0, 1))
    k("s_waitcnt lgkmcnt(0)")
    if first:
        k(f"global_load_dword v{TMP+70}, v12, s[36:37] sc1")
    epiA = fix(softmax_group(G.accA, 0, "dyn"))
    gemmB(ctx, epiA)
    k(f"ds_write_b128 v27, {vr(G.CSA+4,4)} offset:4096")
    k("s_waitcnt lgkmcnt(0)")
    k("s_barrier")
    k.stamp()
    emit(k, load_cs_wp(1))
    k("s_waitcnt lgkmcnt(0)")
    lkv = k.newlabel("kv")
    k("s_cmp_ge_u32 s7, 4")
    k(f"s_cbranch_scc1 {lkv}")
    emit(k, softmax_group(G.accB, 1, "q"))
    k(f"s_branch L_fin_{k.name}")
    k.label(lkv)
    k.fence()
    for i in range(2):
        for j in range(4):
            emit(k, val_pack(G.accB, i, j, PK + (j & 1) * 2))
            k(f"ds_write_b64 v11, {vr(PK+(j&1)*2,2)} offset:{j*12288+8192+i*512}")
    k("s_waitcnt lgkmcnt(0)")
    k("s_barrier")
    k("s_mul_i32 s12, s3, 12288")
    k("v_lshlrev_b32 v24, 5, v8")
    k("v_lshl_add_u32 v24, v7, 3, v24")
    k("v_add_u32 v24, s12, v24")
    A = G.FR; B = G.FR + 32
    for ks in range(4):
        for t1 in range(2):
            for hf in range(2):
                k(f"ds_read_b64_tr_b16 {vr(A+(hf*4+ks)*4+t1*2,2)}, v24 offset:{hf*4096+ks*1024+t1*512}")
            k(f"ds_read_b64_tr_b16 {vr(B+ks*4+t1*2,2)}, v24 offset:{8192+ks*1024+t1*512}")
    k("s_sub_u32 s10, s7, 4")
    k("s_lshl_b32 s10, s10, 2")
    k("s_add_u32 s10, s10, s3")
    k("s_lshl_b32 s14, s10, 11")
    k(f"s_add_u32 s14, s14, {KV}")
    add64(k, 54, S_WS, "s14")
    k("s_lshl_b32 s14, s10, 7")
    k(f"s_add_u32 s14, s14, {ZZ}")
    add64(k, 56, S_WS, "s14")
    k("v_lshlrev_b32 v25, 2, v1")
    k("s_waitcnt lgkmcnt(0)")
    Dv = G.ACCA; Z = G.ACCA + 8
    for ks in range(4):
        for hf in range(2):
            c = "0" if ks == 0 else vr(Dv + hf * 4, 4)
            k(f"v_mfma_f32_16x16x32_bf16 {vr(Dv+hf*4,4)}, {vr(A+(hf*4+ks)*4,4)}, {vr(B+ks*4,4)}, {c}")
            c = "0" if ks == 0 else vr(Z + hf * 4, 4)
            k(f"v_mfma_f32_16x16x32_bf16 {vr(Z+hf*4,4)}, {vr(ONES,4)}, {vr(A+(hf*4+ks)*4,4)}, {c}")
    if first:
        lp = k.newlabel("poll")
        lq = k.newlabel("pollok")
        k.label(lp)
        k("s_waitcnt vmcnt(0)")
        k(f"v_readfirstlane_b32 s14, v{TMP+70}")
        k("s_cmp_ge_u32 s14, 4")
        k(f"s_cbranch_scc1 {lq}")
        k("s_sleep 2")
        k(f"global_load_dword v{TMP+70}, v12, s[36:37] sc1")
        k(f"s_branch {lp}")
        k.label(lq)
        k.fence()
    for hf in range(2):
        for r in range(4):
            k(f"global_atomic_add_f32 v25, v{Dv+hf*4+r}, s[54:55] offset:{hf*1024+r*256}")
    k("s_mov_b64 exec, 0xffff")
    k(f"global_atomic_add_f32 v25, v{Z}, s[56:57]")
    k(f"global_atomic_add_f32 v25, v{Z+4}, s[56:57] offset:64")
    k("s_mov_b64 exec, -1")


class BranchGroup:
    def __init__(self, q, kk):
        self.q, self.kk = q, kk

def emit2(k, lst):
    for x in lst:
        if isinstance(x, BranchGroup):
            l1, l2 = k.newlabel("bq"), k.newlabel("be")
            k("s_cmp_ge_u32 s7, 4")
            k(f"s_cbranch_scc1 {l1}")
            k.begin_cond()
            emit(k, x.q)
            k.end_cond()
            k(f"s_branch {l2}")
            k.label(l1)
            k.begin_cond()
            emit(k, x.kk)
            k.end_cond()
            k.label(l2)
        elif isinstance(x, (list, tuple)):
            emit(k, x)
        else:
            k(x)

def gemmB(ctx, epi):
    k, reads, mfmas = ctx["k"], ctx["reads"], ctx["mfmas"]
    chunk = (len(epi) + 7) // 8
    for s in range(8):
        side = (reads(s + 1, 1) if s < 7 else []) + epi[s * chunk:(s + 1) * chunk]
        emit2(k, interleave(mfmas(s, 1), side))
        k("s_waitcnt lgkmcnt(0)")
```

```python
from v2_common import *
from k4v2 import stats_list

OREG = 131072

def gen_k2(name, layer):
    a = layer == "a"
    PHI = L.PHIQA if a else L.PHIQB
    KV = L.KVA if a else L.KVB
    ZZ = L.ZA if a else L.ZB
    XIN = L.XF0 if a else L.X2F
    XOUT = L.X1F if a else L.X3F
    STO = L.ST1 if a else L.ST3
    k = Kernel(name)
    prologue(k)
    k("s_and_b32 s8, s2, 7")
    k("s_lshr_b32 s9, s2, 3")
    k("s_lshl_b32 s6, s8, 3")
    k("s_and_b32 s10, s9, 7")
    k("s_add_u32 s6, s6, s10")
    k("s_lshr_b32 s7, s9, 3")
    lane_setup(k)
    k("v_lshlrev_b32 v9, 2, v1")
    k("v_mov_b32 v10, 0x3f803f80")
    KVR, PQ, ZR, KT = 32, 96, 160, 192
    k("s_lshl_b32 s10, s3, 10")
    k(f"s_add_u32 s10, s10, {ZZ}")
    k("s_lshl_b32 s11, s3, 14")
    k(f"s_add_u32 s11, s11, {KV}")
    k("s_lshl_b32 s12, s6, 6")
    k("s_lshl_b32 s13, s3, 3")
    k("s_add_u32 s12, s12, s13")
    k("s_lshl_b32 s12, s12, 10")
    k(f"s_add_u32 s12, s12, {PHI}")
    k("v_add_u32 v16, 4096, v9")
    k("v_add_u32 v17, 8192, v9")
    k("v_add_u32 v18, 12288, v9")
    k("v_add_u32 v19, 4096, v5")
    k("v_add_u32 v20, 32768, v5")
    k("v_add_u32 v21, 36864, v5")
    k("s_waitcnt lgkmcnt(0)")
    k.stamp()
    add64(k, 40, S_WS, "s10")
    add64(k, 42, S_WS, "s11")
    add64(k, 44, S_WS, "s12")
    k("global_load_dwordx4 v[12:15], v5, s[40:41]")
    def hload(h):
        L_ = []
        for j in range(8):
            off = h * 2048 + j * 256
            vo = [9, 16, 17, 18][off >> 12]
            L_.append(f"global_load_dword v{KVR+h*8+j}, v{vo}, s[42:43] offset:{off&4095}")
        for i in range(2):
            vo = [5, 19, 20, 21][i * 2 + (h >> 2)]
            L_.append(f"global_load_dwordx4 {vr(PQ+(i*8+h)*4,4)}, v{vo}, s[44:45] offset:{(h&3)*1024}")
        return L_
    for h in range(4):
        emit(k, hload(h))
    k("v_lshrrev_b32 v22, 1, v3")
    k("s_and_b32 s10, s3, 1")
    k("s_lshl_b32 s10, s10, 2")
    k("v_add_u32 v23, s10, v4")
    k("v_xor_b32 v23, v22, v23")
    k("v_and_b32 v25, 1, v1")
    k("v_lshlrev_b32 v25, 4, v25")
    k("v_lshl_add_u32 v25, v4, 10, v25")
    k("v_lshl_add_u32 v23, v23, 5, v25")
    k("s_lshl_b32 s10, s3, 12")
    k("s_lshl_b32 s11, s7, 8")
    k("s_add_u32 s10, s10, s11")
    add64(k, 46, S_WO, "s10")
    k("s_lshl_b32 s48, s3, 10")
    def wodma(u0, u1):
        L_ = []
        for u in range(u0, u1):
            L_.append(f"s_add_u32 m0, s48, {u*4096}")
            L_.append("global_load_lds_dwordx4 v23, s[46:47]")
            L_.append("s_add_u32 s46, s46, 16384")
            L_.append("s_addc_u32 s47, s47, 0")
        return L_
    k("s_lshl_b32 s10, s3, 12")
    k(f"s_add_u32 s49, s10, {OREG}")
    k("s_waitcnt vmcnt(40)")
    k("v_cvt_pk_bf16_f32 v12, v12, v13")
    k("v_cvt_pk_bf16_f32 v13, v14, v15")
    k("v_lshl_add_u32 v14, v1, 3, s49")
    k("ds_write_b64 v14, v[12:13]")
    k("v_lshl_add_u32 v14, v4, 3, s49")
    k("s_waitcnt lgkmcnt(0)")
    for h in range(8):
        k(f"ds_read_b64 {vr(ZR+h*4,2)}, v14 offset:{h*64}")
        k(f"ds_read_b64 {vr(ZR+h*4+2,2)}, v14 offset:{h*64+32}")
    k("s_lshl_b32 s10, s6, 5")
    k("s_lshl_b32 s11, s7, 2")
    k("s_add_u32 s10, s10, s11")
    k("s_add_u32 s10, s10, s3")
    k("s_lshl_b32 s50, s10, 10")
    k(f"s_add_u32 s10, s50, {XIN}")
    add64(k, 52, S_WS, "s10")
    k(f"v_mov_b32 v29, {f32hex(1e-6)}")
    k("v_add_u32 v15, s49, v5")
    issued = [1] + [10] * 4
    def after(idx): return sum(issued[idx + 1:])
    hidx = {h: h + 1 for h in range(4)}
    nd = 0
    for h in range(8):
        k(f"s_waitcnt vmcnt({after(hidx[h])})" + (" lgkmcnt(0)" if h == 0 else ""))
        if h in (0, 4):
            k.stamp()
        ext = []
        if h + 4 < 8:
            ext = hload(h + 4); issued.append(10); hidx[h + 4] = len(issued) - 1
        else:
            ext = wodma(nd, nd + 8); nd += 8; issued.append(8)
        body = []
        for j in range(4):
            body.append(f"v_cvt_pk_bf16_f32 v{KT+h*4+j}, v{KVR+h*8+2*j}, v{KVR+h*8+2*j+1}")
        for i in range(2):
            nm = 224 + i * 8
            body.append(f"v_mfma_f32_16x16x32_bf16 {vr(nm,4)}, {vr(KT+h*4,4)}, {vr(PQ+(i*8+h)*4,4)}, 0")
            body.append(f"v_mfma_f32_16x16x32_bf16 {vr(nm+4,4)}, {vr(ZR+h*4,4)}, {vr(PQ+(i*8+h)*4,4)}, 0")
        emit(k, body)
        emit(k, ext)
        body = []
        for i in range(2):
            nm = 224 + i * 8
            d = nm + 4
            body.append(f"v_cvt_pk_bf16_f32 v{d}, 0, v{d}")
            body.append(f"v_add_f32 v{d}, v{d}, v29")
            body.append(f"v_cvt_pk_bf16_f32 v{d}, 0, v{d}")
            body.append(f"v_rcp_f32 v{d}, v{d}")
            for e in range(4):
                body.append(f"v_cvt_pk_bf16_f32 v{nm+e}, 0, v{nm+e}")
            body.append(f"v_pk_mul_f32 {vr(nm,2)}, {vr(nm,2)}, {vr(d,2)} op_sel_hi:[1,0]")
            body.append(f"v_pk_mul_f32 {vr(nm+2,2)}, {vr(nm+2,2)}, {vr(d,2)} op_sel_hi:[1,0]")
            of = PQ + (i * 8 + (h & ~1)) * 4 + (h & 1) * 2
            body.append(f"v_cvt_pk_bf16_f32 v{of}, v{nm}, v{nm+1}")
            body.append(f"v_cvt_pk_bf16_f32 v{of+1}, v{nm+2}, v{nm+3}")
            if h & 1:
                body.append(f"ds_write_b128 v15, {vr(PQ+(i*8+h-1)*4,4)} offset:{i*16384+(h>>1)*1024}")
        emit(k, body)
    assert nd == 32
    k("global_load_dwordx4 v[12:15], v5, s[52:53]")
    k("v_add_u32 v16, 16384, v5")
    k("global_load_dwordx4 v[16:19], v16, s[52:53]")
    k("v_and_b32 v26, 7, v8")
    k("v_lshlrev_b32 v27, 8, v8")
    k("v_lshl_add_u32 v27, v7, 3, v27")
    k("s_lshl_b32 s10, s3, 1")
    k("v_xor_b32 v28, s10, v26")
    k("v_lshl_add_u32 v20, v28, 5, v27")
    k("v_xor_b32 v28, 1, v28")
    k("v_lshl_add_u32 v21, v28, 5, v27")
    k("v_add_u32 v22, 65536, v20")
    k("v_add_u32 v23, 65536, v21")
    k(f"v_add_u32 v24, {OREG}, v5")
    k("s_waitcnt vmcnt(2) lgkmcnt(0)")
    k("s_barrier")
    k.stamp()
    ACC, FRB = 32, 64
    def reads(s):
        L_ = []
        fb = FRB + (s & 1) * 64
        for kk in range(4):
            p = 4 * s + kk
            for i in range(2):
                L_.append(f"ds_read_b128 {vr(fb+kk*16+i*4,4)}, v24 offset:{i*16384+p*1024}")
            for nt in range(2):
                for t1 in range(2):
                    off = p * 8192 + t1 * 4096
                    L_.append(f"ds_read_b64_tr_b16 {vr(fb+kk*16+8+nt*4+t1*2,2)}, v{20+nt+(2 if off>=65536 else 0)} offset:{off&65535}")
        return L_
    def mfmas(s):
        L_ = []
        fb = FRB + (s & 1) * 64
        for kk in range(4):
            for nt in range(2):
                for i in range(2):
                    ac = ACC + (i * 2 + nt) * 4
                    c = "0" if (s == 0 and kk == 0) else vr(ac, 4)
                    L_.append(f"v_mfma_f32_16x16x32_bf16 {vr(ac,4)}, {vr(fb+kk*16+8+nt*4,4)}, {vr(fb+kk*16+i*4,4)}, {c}")
        return L_
    emit(k, reads(0))
    for s in range(4):
        k("s_waitcnt lgkmcnt(0)")
        emit(k, interleave(mfmas(s), reads(s + 1) if s < 3 else []))
    k.stamp()
    if a:
        lz = k.newlabel("z")
        k("s_cmp_ge_u32 s2, 17")
        k(f"s_cbranch_scc1 {lz}")
        k("s_cmp_lg_u32 s3, 0")
        k(f"s_cbranch_scc1 {lz}")
        k.begin_cond()
        for j in range(4):
            k(f"v_mov_b32 v{24+j}, 0")
        k("s_lshl_b32 s10, s2, 12")
        k(f"s_add_u32 s10, s10, {L.KVB}")
        add64(k, 54, S_WS, "s10")
        for j in range(4):
            k(f"global_store_dwordx4 v5, v[24:27], s[54:55] offset:{j*1024}")
        k.end_cond()
        k.label(lz)
    k("s_waitcnt vmcnt(0)")
    OUTR = 48
    for i in range(2):
        for q2 in range(4):
            f = ACC + i * 8 + q2 * 2
            xr = 12 + i * 4 + q2
            k(f"v_cvt_pk_bf16_f32 v{f}, 0, v{f}")
            k(f"v_cvt_pk_bf16_f32 v{f+1}, 0, v{f+1}")
            k(f"v_lshlrev_b32 v26, 16, v{xr}")
            k(f"v_and_b32 v27, 0xffff0000, v{xr}")
            k(f"v_pk_add_f32 {vr(f,2)}, {vr(f,2)}, v[26:27]")
            k(f"v_cvt_pk_bf16_f32 v{OUTR+i*4+q2}, v{f}, v{f+1}")
    k(f"s_add_u32 s10, s50, {XOUT}")
    add64(k, 54, S_WS, "s10")
    k("v_add_u32 v20, 16384, v5")
    k(f"global_store_dwordx4 v5, {vr(OUTR,4)}, s[54:55]")
    k(f"global_store_dwordx4 v20, {vr(OUTR+4,4)}, s[54:55]")
    k("s_lshl_b32 s10, s7, 2")
    k("s_add_u32 s10, s10, s3")
    k("s_lshr_b32 s11, s10, 3")
    k("s_lshl_b32 s11, s11, 10")
    k("s_lshr_b32 s12, s10, 1")
    k("s_and_b32 s12, s12, 3")
    k("s_lshl_b32 s12, s12, 8")
    k("s_add_u32 s11, s11, s12")
    k("s_and_b32 s12, s10, 1")
    k("s_lshl_b32 s12, s12, 3")
    k("s_add_u32 s11, s11, s12")
    k("s_lshl_b32 s12, s6, 12")
    k("s_add_u32 s11, s11, s12")
    k(f"s_add_u32 s11, s11, {STO}")
    add64(k, 56, S_WS, "s11")
    emit(k, interleave(stats_list(OUTR, 4, 24, 25, 10), stats_list(OUTR + 4, 4, 26, 27, 10)))
    emit(k, red4([24, 25, 26, 27], (0, 0), "v_add_f32"))
    k("s_mov_b64 exec, 0xffff")
    k("global_store_dwordx2 v5, v[24:25], s[56:57]")
    k("global_store_dwordx2 v5, v[26:27], s[56:57] offset:2048")
    k("s_mov_b64 exec, -1")
    finish(k)
    return k, 163840, 256
```

```python
from v2_common import *
import os
PERTURB = float(os.environ.get("PERTURB", "0"))

def stats_list(packed, n, vS, vQ, ones):
    L_ = [f"v_mov_b32 v{vS}, 0", f"v_mov_b32 v{vQ}, 0"]
    for j in range(n):
        L_.append(f"v_dot2_f32_bf16 v{vS}, v{packed+j}, v{ones}, v{vS}")
        L_.append(f"v_dot2_f32_bf16 v{vQ}, v{packed+j}, v{packed+j}, v{vQ}")
    return L_

def gen_k4(name, layer):
    a = layer == "a"
    HF = L.HFA if a else L.HFB
    XIN = L.X1F if a else L.X3F
    k = Kernel(name)
    prologue(k)
    NST, D, R = 14, 4, 6
    k("s_and_b32 s8, s2, 7")
    k("s_lshr_b32 s9, s2, 3")
    k("s_lshl_b32 s6, s8, 2")
    k("s_and_b32 s10, s9, 3")
    k("s_add_u32 s6, s6, s10")
    k("s_lshr_b32 s7, s9, 2")
    lane_setup(k)
    k("v_lshrrev_b32 v15, 3, v1")
    k("v_and_b32 v16, 7, v1")
    k("v_lshrrev_b32 v17, 1, v16")
    k("v_lshrrev_b32 v18, 1, v15")
    k("v_and_b32 v18, 3, v18")
    k("v_xor_b32 v17, v17, v18")
    k("v_and_b32 v16, 1, v16")
    k("v_lshlrev_b32 v16, 4, v16")
    k("v_lshl_add_u32 v16, v17, 5, v16")
    k("v_lshl_add_u32 v15, v15, 10, v16")
    k("s_lshl_b32 s10, s6, 2")
    k("s_add_u32 s45, s10, s3")
    k("s_mul_i32 s10, s45, 57344")
    k(f"s_add_u32 s10, s10, {HF}")
    k("s_lshl_b32 s11, s3, 13")
    k("s_lshl_b32 s12, s7, 7")
    k("s_add_u32 s11, s11, s12")
    k("s_cmp_ge_u32 s3, 2")
    k("s_cselect_b32 s12, 98304, 0")
    k("s_add_u32 s12, s12, s11")
    k("s_lshl_b32 s48, s3, 10")
    k("s_waitcnt lgkmcnt(0)")
    k.stamp()
    add64(k, 40, S_WS, "s10")
    add64(k, 42, S_W2, "s11")
    add64(k, 46, S_W2, "s12")
    ACC, FR, TRA = 32, 64, 192
    def hreg(s, kk): return (s % R) * 16 + kk * 4
    def static_row(ps):
        return ps * 32, False
    def issue(s):
        L_ = []
        for kk in range(4):
            L_.append(f"global_load_dwordx4 a[{hreg(s,kk)}:{hreg(s,kk)+3}], v5, s[40:41] offset:{kk*1024}")
            r, six = static_row(4 * s + kk)
            b = 46 if six else 42
            L_.append(f"s_add_u32 s50, s{b}, {r*1024}")
            L_.append(f"s_addc_u32 s51, s{b+1}, 0")
            L_.append(f"s_add_u32 m0, s48, {(s%R)*16384+kk*4096}")
            L_.append("global_load_lds_dwordx4 v15, s[50:51]")
        L_.append("s_add_u32 s40, s40, 4096")
        L_.append("s_addc_u32 s41, s41, 0")
        return L_
    for s in range(D):
        emit(k, issue(s))
    k("v_lshrrev_b32 v16, 1, v8")
    k("v_and_b32 v16, 3, v16")
    k("v_lshlrev_b32 v17, 7, v8")
    k("v_lshl_add_u32 v17, v7, 3, v17")
    for nt in range(4):
        k(f"v_xor_b32 v18, {nt}, v16")
        k(f"v_lshl_add_u32 v{TRA+nt}, v18, 5, v17")
        k(f"v_add_u32 v{TRA+4+nt}, 65536, v{TRA+nt}")
    k("v_mov_b32 v10, 0x3f803f80")
    def reads(s):
        L_ = []
        fb = FR + (s & 1) * 64
        slot = s % R
        for kk in range(4):
            for nt in range(4):
                for t1 in range(2):
                    off = slot * 16384 + kk * 4096 + t1 * 2048
                    L_.append(f"ds_read_b64_tr_b16 {vr(fb+(kk*4+nt)*4+t1*2,2)}, v{TRA+nt+(4 if off>=65536 else 0)} offset:{off&65535}")
        return L_
    def mfmas(s):
        L_ = []
        fb = FR + (s & 1) * 64
        for kk in range(4):
            for nt in range(4):
                c = "0" if (s == 0 and kk == 0) else vr(ACC + nt * 4, 4)
                L_.append(f"v_mfma_f32_16x16x32_bf16 {vr(ACC+nt*4,4)}, {vr(fb+(kk*4+nt)*4,4)}, a[{hreg(s,kk)}:{hreg(s,kk)+3}], {c}")
        return L_
    extra = 0
    for s in range(NST):
        rem = min(D - 1, NST - 1 - s)
        k(f"s_waitcnt vmcnt({rem*8+extra}) lgkmcnt(0)")
        k("s_barrier")
        if s % 2 == 0:
            k.stamp()
        side = reads(s)
        if s + D < NST:
            side = interleave(side, issue(s + D))
        elif s + D == NST:
            pre = ["s_lshl_b32 s10, s45, 4", "s_lshl_b32 s11, s7, 1", "s_add_u32 s10, s10, s11", "s_lshl_b32 s49, s10, 10",
                   f"s_add_u32 s10, s49, {XIN}", f"s_add_u32 s52, s{S_WS}, s10", f"s_addc_u32 s53, s{S_WS+1}, 0",
                   "global_load_dwordx4 v[200:203], v5, s[52:53]", "global_load_dwordx4 v[204:207], v5, s[52:53] offset:1024",
                   "s_lshl_b32 s10, s7, 7", f"s_add_u32 s54, s{S_B2}, s10", f"s_addc_u32 s55, s{S_B2+1}, 0", "v_lshlrev_b32 v20, 3, v4"]
            pre += [f"global_load_dwordx2 {vr(208+nt*2,2)}, v20, s[54:55] offset:{nt*32}" for nt in range(4)]
            side = side + pre
            extra = 6
        if s > 0:
            emit(k, interleave(mfmas(s - 1), side))
        else:
            emit(k, side)
    k("s_waitcnt lgkmcnt(0)")
    k.stamp()
    emit(k, mfmas(NST - 1))
    k("s_waitcnt vmcnt(0)")
    OUTR = 48
    for q2 in range(8):
        f = ACC + q2 * 2
        k(f"v_cvt_pk_bf16_f32 v{f}, 0, v{f}")
        k(f"v_cvt_pk_bf16_f32 v{f+1}, 0, v{f+1}")
        k(f"v_lshlrev_b32 v26, 16, v{208+q2}")
        k(f"v_and_b32 v27, 0xffff0000, v{208+q2}")
        k(f"v_pk_add_f32 {vr(f,2)}, {vr(f,2)}, v[26:27]")
        k(f"v_cvt_pk_bf16_f32 v{f}, 0, v{f}")
        k(f"v_cvt_pk_bf16_f32 v{f+1}, 0, v{f+1}")
        k(f"v_lshlrev_b32 v28, 16, v{200+q2}")
        k(f"v_and_b32 v29, 0xffff0000, v{200+q2}")
        k(f"v_pk_add_f32 {vr(f,2)}, {vr(f,2)}, v[28:29]")
        if PERTURB and not a:
            k(f"v_mul_f32 v{f}, {f32hex(1+PERTURB)}, v{f}")
            k(f"v_mul_f32 v{f+1}, {f32hex(1-PERTURB)}, v{f+1}")
        k(f"v_cvt_pk_bf16_f32 v{OUTR+q2}, v{f}, v{f+1}")
    if a:
        k(f"s_add_u32 s10, s49, {L.X2F}")
        add64(k, 54, S_WS, "s10")
        k(f"global_store_dwordx4 v5, {vr(OUTR,4)}, s[54:55]")
        k(f"global_store_dwordx4 v5, {vr(OUTR+4,4)}, s[54:55] offset:1024")
        k("s_lshr_b32 s12, s7, 1")
        k("s_lshl_b32 s11, s12, 8")
        k("s_and_b32 s12, s7, 1")
        k("s_lshl_b32 s12, s12, 3")
        k("s_add_u32 s11, s11, s12")
        k("s_lshl_b32 s12, s45, 11")
        k("s_add_u32 s11, s11, s12")
        k(f"s_add_u32 s11, s11, {L.ST2}")
        add64(k, 56, S_WS, "s11")
        emit(k, stats_list(OUTR, 8, 24, 25, 10))
        allreduce_g(k, 24, 28, "v_add_f32")
        allreduce_g(k, 25, 29, "v_add_f32")
        k("s_mov_b64 exec, 0xffff")
        k("global_store_dwordx2 v5, v[24:25], s[56:57]")
        k("s_mov_b64 exec, -1")
    else:
        k("s_lshl_b32 s10, s3, 12")
        k(f"s_add_u32 s10, s10, {R*16384}")
        k("v_mul_u32_u24 v20, 144, v3")
        k("v_lshl_add_u32 v20, v4, 3, v20")
        k("v_add_u32 v20, s10, v20")
        for nt in range(4):
            k(f"ds_write_b64 v20, {vr(OUTR+nt*2,2)} offset:{nt*32}")
        k("v_lshrrev_b32 v21, 2, v1")
        k("v_and_b32 v22, 3, v1")
        k("v_mul_u32_u24 v23, 144, v21")
        k("v_lshl_add_u32 v23, v22, 4, v23")
        k("v_add_u32 v23, s10, v23")
        k("s_waitcnt lgkmcnt(0)")
        k("ds_read_b128 v[24:27], v23")
        k("ds_read_b128 v[28:31], v23 offset:64")
        k("v_lshlrev_b32 v21, 10, v21")
        k("v_lshl_add_u32 v21, v22, 4, v21")
        k("s_lshl_b32 s10, s45, 14")
        k("s_lshl_b32 s11, s7, 7")
        k("s_add_u32 s10, s10, s11")
        add64(k, 54, S_OUT, "s10")
        k("s_waitcnt lgkmcnt(0)")
        k("global_store_dwordx4 v21, v[24:27], s[54:55]")
        k("global_store_dwordx4 v21, v[28:31], s[54:55] offset:64")
    finish(k)
    return k, R * 16384 + 16384, 256 + R * 16
```

```python
import numpy as np
MB = 1 << 20
XF0 = 0
PHIQA = 2 * MB
PHIQB = 6 * MB
X1F = 10 * MB
X2F = 12 * MB
X3F = 14 * MB
HFA = 16 * MB
HFB = 24 * MB
KVA = 32 * MB
ZA = KVA + 65536
KVB = 32 * MB + 131072
ZB = KVB + 65536
ST1 = 33 * MB
ST2 = ST1 + 262144
ST3 = ST2 + 262144
WS_USED = 34 * MB

def fm_to_rows(a, C):
    P = C // 32
    a = a.reshape(128, P, 4, 16, 2, 4)
    a = a.transpose(0, 3, 1, 4, 2, 5)
    return a.reshape(2048, C)

def hf_to_rows(a):
    return fm_to_rows(a, 1792)
```

```python
from k_common import *

def interleave(main, side, ratio=None):
    out = []
    if not main:
        return list(side)
    n, m = len(main), len(side)
    j = 0
    for i, x in enumerate(main):
        out.append(x)
        tgt = (i + 1) * m // n
        while j < tgt:
            out.append(side[j]); j += 1
    out.extend(side[j:])
    return out

def emit(k, lst):
    for x in lst:
        if isinstance(x, (list, tuple)):
            emit(k, x)
        else:
            k(x)

def lane_setup(k):
    k("v_and_b32 v3, 15, v1")
    k("v_lshrrev_b32 v4, 4, v1")
    k("v_lshlrev_b32 v5, 4, v1")
    k("v_lshrrev_b32 v6, 2, v3")
    k("v_and_b32 v7, 3, v3")
    k("v_lshl_add_u32 v8, v4, 2, v6")

def rbf1(d, s):
    return [f"v_cvt_pk_bf16_f32 v{d}, 0, v{s}"]

def red4(q, tmp, op):
    a, b, c, d = q
    t0, t1 = tmp
    L_ = []
    L_.append(f"v_permlane32_swap_b32 v{a}, v{b}")
    L_.append(f"v_permlane32_swap_b32 v{c}, v{d}")
    L_.append(f"{op} v{a}, v{a}, v{b}")
    L_.append(f"{op} v{c}, v{c}, v{d}")
    L_.append(f"v_permlane16_swap_b32 v{a}, v{c}")
    L_.append(f"{op} v{a}, v{a}, v{c}")
    L_.append(f"v_mov_b32 v{c}, v{a}")
    L_.append(f"v_permlane16_swap_b32 v{a}, v{c}")
    L_.append(f"v_mov_b32 v{b}, v{a}")
    L_.append(f"v_mov_b32 v{d}, v{c}")
    L_.append(f"v_permlane32_swap_b32 v{a}, v{b}")
    L_.append(f"v_permlane32_swap_b32 v{c}, v{d}")
    return L_
```

```python
import sys, os
from asmlib import Kernel
Kernel.STAMPS = bool(os.environ.get("STAMPS"))
from k_common import *
from g8 import gen_g8
from g4 import gen_k2
import g4, k4v2
NAME = "interleave_layers__linear_kernel_hedgehog__mixer_channel_mlp__prompt"
V = os.environ.get("VER", "2222")
def norm(r, bs):
    if len(r) == 2: return (r[0], r[1], 256, bs)
    return (r[0], r[1], r[2], 256)
def main(out):
    ks = []
    for layer in "ab":
        if V[0] == "1": ks.append(norm(gen_g8(f"k1{layer}_kernel", "k1", layer), 512))
        else:
            import k13v3; ks.append(norm(k13v3.gen(f"k1{layer}_kernel", "k1", layer), 256))
        if V[1] == "1": ks.append(norm(gen_k2(f"k2{layer}_kernel", layer), 256))
        else:
            import k2v2; ks.append(norm(k2v2.gen_k2(f"k2{layer}_kernel", layer), 256))
        if V[2] == "1": ks.append(norm(gen_g8(f"k3{layer}_kernel", "k3", layer), 512))
        else:
            import k13v3; ks.append(norm(k13v3.gen(f"k3{layer}_kernel", "k3", layer), 256))
        if V[3] == "1": ks.append(norm(g4.gen_k4(f"k4{layer}_kernel", layer), 256))
        else: ks.append(norm(k4v2.gen_k4(f"k4{layer}_kernel", layer), 256))
    head = open(f"cdna_kernels/{NAME}.s.ref").read().split("; Override launch")[0]
    s = head
    for k, lds, nv, bs in ks:
        s += f"; @launch kernel={k.name} grid=(256,1,1) block=({bs},1,1) lds={lds}\n"
    s += '.amdgcn_target "amdgcn-amd-amdhsa--gfx950"\n.text\n'
    for k, lds, nv, bs in ks:
        s += wrap(k)
    s += '.section .rodata,"a"\n'
    for k, lds, nv, bs in ks:
        s += descriptor(k.name, nv)
    open(out, "w").write(s)
main(sys.argv[1] if len(sys.argv) > 1 else f"cdna_kernels/{NAME}.s")
```
